```python
import torch

def _softmax(x, axis=-1):
    return torch.softmax(x, dim=axis)
def _gelu(x):
    return torch.nn.functional.gelu(x, approximate="tanh")
def _silu(x):
    return torch.nn.functional.silu(x)
def _sigmoid(x):
    return torch.sigmoid(x)
def _layernorm(x, axis=-1, eps=1e-5):
    m = x.mean(dim=axis, keepdim=True)
    v = x.var(dim=axis, keepdim=True, unbiased=False)
    return (x - m) / torch.sqrt(v + eps)
def _scatter_add(tgt, idx, src, axis=0):
    return tgt.clone().index_add_(axis, idx, src)
def _segment_sum(src, seg, n):
    out = torch.zeros((n,) + src.shape[1:], dtype=src.dtype)
    return out.index_add_(0, seg, src)
def _pad(x, pw):
    flat = tuple(v for pair in reversed(pw) for v in pair)
    return torch.nn.functional.pad(x, flat)

kernel_name = 'concat_heads__mha_block_cached__mha_block_cached__near_ridge'

def setup_inputs():

    _w = (lambda a: (lambda t: t.to(torch.bfloat16) if t.is_floating_point() else t)(torch.as_tensor(a)))
    def _A_setup():
        B, Sq, D = 16, 112, 512
        H, Sk, Dh = 32, 512, 128
        return {
            "x": _w((lambda *s: torch.randn(*s, dtype=torch.bfloat16) * 0.8)(B, Sq, D)),
            "k_cache": _w((lambda *s: torch.randn(*s, dtype=torch.bfloat16) * 0.8)(B, H, Sk, Dh)),
            "v_cache": _w((lambda *s: torch.randn(*s, dtype=torch.bfloat16) * 0.05)(B, H, Sk, Dh)),
            "wq": _w((lambda *s: torch.randn(*s, dtype=torch.bfloat16) * 0.8)(D, H * Dh) * (D ** -0.5)),
            "wo": _w((lambda *s: torch.randn(*s, dtype=torch.bfloat16) * 0.05)(H * Dh, D) * ((H * Dh) ** -0.5)),
        }
    _A_in = _A_setup()

    def _B_setup():
        B, Sq, D = 16, 112, 512
        H, Sk, Dh = 32, 512, 128
        return {
            "x": _w((lambda *s: torch.randn(*s, dtype=torch.bfloat16) * 0.8)(B, Sq, D)),
            "k_cache": _w((lambda *s: torch.randn(*s, dtype=torch.bfloat16) * 0.8)(B, H, Sk, Dh)),
            "v_cache": _w((lambda *s: torch.randn(*s, dtype=torch.bfloat16) * 0.05)(B, H, Sk, Dh)),
            "wq": _w((lambda *s: torch.randn(*s, dtype=torch.bfloat16) * 0.8)(D, H * Dh) * (D ** -0.5)),
            "wo": _w((lambda *s: torch.randn(*s, dtype=torch.bfloat16) * 0.05)(H * Dh, D) * ((H * Dh) ** -0.5)),
        }
    _B_in = _B_setup()

    return {
        "A_x": _A_in["x"],
        "A_k_cache": _A_in["k_cache"],
        "A_v_cache": _A_in["v_cache"],
        "A_wq": _A_in["wq"],
        "A_wo": _A_in["wo"],
        "B_x": _B_in["x"],
        "B_k_cache": _B_in["k_cache"],
        "B_v_cache": _B_in["v_cache"],
        "B_wq": _B_in["wq"],
        "B_wo": _B_in["wo"],
    }

def reference(A_x, A_k_cache, A_v_cache, A_wq, A_wo, B_x, B_k_cache, B_v_cache, B_wq, B_wo):
    def _A_ref(x, k_cache, v_cache, wq, wo):
        B, Sq, D = x.shape
        H, Dh = 32, 128
        q = (lambda x, *d: x.permute(*d))((x @ wq).reshape(B, Sq, H, Dh), 0, 2, 1, 3)
        scores = torch.einsum("bhqd,bhkd->bhqk", q, k_cache) * (Dh ** -0.5)
        p = _softmax(scores, axis=-1)
        o = torch.einsum("bhqk,bhkd->bhqd", p, v_cache)
        return (lambda x, *d: x.permute(*d))(o, 0, 2, 1, 3).reshape(B, Sq, H * Dh) @ wo

    def _B_ref(x, k_cache, v_cache, wq, wo):
        B, Sq, D = x.shape
        H, Dh = 32, 128
        q = (lambda x, *d: x.permute(*d))((x @ wq).reshape(B, Sq, H, Dh), 0, 2, 1, 3)
        scores = torch.einsum("bhqd,bhkd->bhqk", q, k_cache) * (Dh ** -0.5)
        p = _softmax(scores, axis=-1)
        o = torch.einsum("bhqk,bhkd->bhqd", p, v_cache)
        return (lambda x, *d: x.permute(*d))(o, 0, 2, 1, 3).reshape(B, Sq, H * Dh) @ wo

    a = _A_ref(A_x, A_k_cache, A_v_cache, A_wq, A_wo)
    b = _B_ref(B_x, B_k_cache, B_v_cache, B_wq, B_wo)
    return torch.concatenate([a, b], axis=-1)
```

```python
import sys

NAME = "concat_heads__mha_block_cached__mha_block_cached__near_ridge"
WS_BYTES = 288882688
HEADER = open("header.txt").read()

L_KV = 0
L_W = 65536
L_SP = 98304
L_Q = 131072
LDS_BYTES = 163840

S_X, S_K, S_V, S_WQ, S_WO, S_P = 36, 40, 44, 48, 52, 56
S_W = 60
S_T0, S_T1, S_T2, S_T3 = 61, 62, 63, 64
S_KVOFF = 65
S_WOFF = 66
S_M0KV = 67
S_M0W = 68
S_CNT = 69
S_ITEM = 70
S_SCALE = 71
S_PO0, S_PO1 = 72, 73
S_M0X = 74
S_ST = 76
S_WS = 80
S_PC = 84


class Em:
    def __init__(self):
        self.L = []

    def __call__(self, s):
        self.L.append("    " + s)

    def label(self, s):
        self.L.append(s + ":")

    def raw(self, s):
        self.L.append(s)

    def text(self):
        return "\n".join(self.L) + "\n"


def vr(a, n=1):
    return "v%d" % a if n == 1 else "v[%d:%d]" % (a, a + n - 1)


def sr(a, n=1):
    return "s%d" % a if n == 1 else "s[%d:%d]" % (a, a + n - 1)


def mfma(e, d, a, b, c):
    e("v_mfma_f32_32x32x16_bf16 %s, %s, %s, %s" % (vr(d, 16), vr(a, 4), vr(b, 4), "0" if c is None else vr(c, 16)))


def stream(e, ops, frag0, nfrag, la, pre_issued=0, next_ops=None, fill=None, bar_after=None):
    assert la < nfrag
    allops = list(ops) + (list(next_ops[:la]) if next_ops else [])
    n = len(ops)

    def issue(i):
        for (mn, sub, nr, addr, off) in allops[i][0]:
            e("%s %s, %s offset:%d" % (mn, vr(frag0 + 4 * (i % nfrag) + sub, nr), vr(addr), off))

    issued = pre_issued
    while issued < min(la, len(allops)):
        issue(issued)
        issued += 1
    for i in range(n):
        younger = sum(len(allops[k][0]) for k in range(i + 1, issued))
        assert younger <= 15
        e("s_waitcnt lgkmcnt(%d)" % younger)
        _, d, b, c = ops[i]
        mfma(e, d, frag0 + 4 * (i % nfrag), b, c)
        if issued < len(allops):
            issue(issued)
            issued += 1
        if fill and i in fill:
            for s in fill[i]:
                e(s)
        if bar_after and i in bar_after:
            e("s_barrier")


def tr_reads(ta, ct, ks, base):
    return [("ds_read_b64_tr_b16", 2 * u, 2, ta + ct, base + ks * 4096 + u * 1024) for u in range(2)]


def emit_ta(e, ta, t0, t1, t2, base):
    e("v_lshrrev_b32 %s, 5, v0" % vr(t0))
    e("v_lshlrev_b32 %s, 11, %s" % (vr(t0), vr(t0)))
    e("v_bfe_u32 %s, v0, 2, 2" % vr(t1))
    e("v_lshl_add_u32 %s, %s, 8, %s" % (vr(t0), vr(t1), vr(t0)))
    e("v_bfe_u32 %s, v0, 4, 1" % vr(t2))
    e("v_lshl_add_u32 %s, %s, 5, %s" % (vr(t0), vr(t2), vr(t0)))
    e("v_and_b32 %s, 1, v0" % vr(t2))
    e("v_lshl_add_u32 %s, %s, 4, %s" % (vr(t0), vr(t2), vr(t0)))
    e("v_bfe_u32 %s, v0, 1, 1" % vr(t2))
    e("v_lshl_add_u32 %s, %s, 3, %s" % (vr(t0), vr(t2), vr(t0)))
    if base:
        e("v_add_u32 %s, 0x%x, %s" % (vr(t0), base, vr(t0)))
    for ct in range(4):
        e("v_xor_b32 %s, %d, %s" % (vr(t2), ct, vr(t1)))
        e("v_lshl_add_u32 %s, %s, 6, %s" % (vr(ta + ct), vr(t2), vr(t0)))


def gen_main(e, cfg):
    kvpol = cfg.get("kvpol", "nt")
    wpol = cfg.get("wpol", "nt")
    xpol = cfg.get("xpol", "nt")
    opol = cfg.get("opol", "nt")
    stpol = cfg.get("stpol", "")
    stamps = cfg.get("stamps", False)
    K = "main_kernel"
    e.raw(".globl %s" % K)
    e.raw(".p2align 8")
    e.raw(".type %s,@function" % K)
    e.label(K)
    e("s_cmp_ge_u32 s2, 256")
    e("s_cbranch_scc1 L_end")
    if stamps:
        e("s_memrealtime %s" % sr(S_ST, 2))
    e("s_load_dwordx16 s[4:19], s[0:1], 0")
    e("s_load_dwordx4 s[20:23], s[0:1], 64")
    e("s_load_dwordx2 s[24:25], s[0:1], 96")
    e("s_and_b32 s26, s2, 3")
    e("s_lshl_b32 s26, s26, 1")
    e("s_bfe_u32 s27, s2, 0x10003")
    e("s_or_b32 s26, s26, s27")
    e("s_lshr_b32 s27, s2, 4")
    e("s_bfe_u32 s28, s2, 0x10002")
    e("v_lshrrev_b32 v1, 6, v0")
    e("v_and_b32 v0, 63, v0")
    e("v_readfirstlane_b32 s29, v1")
    e("s_waitcnt lgkmcnt(0)")
    e("s_cmp_lg_u32 s28, 0")
    for srd, a, b in ((S_X, 4, 14), (S_K, 6, 16), (S_V, 8, 18), (S_WQ, 10, 20), (S_WO, 12, 22)):
        e("s_cselect_b32 s%d, s%d, s%d" % (srd, b, a))
        e("s_cselect_b32 s%d, s%d, s%d" % (srd + 1, b + 1, a + 1))
    e("s_mul_i32 s30, s27, 114688")
    e("s_add_u32 s%d, s%d, s30" % (S_X, S_X))
    e("s_addc_u32 s%d, s%d, 0" % (S_X + 1, S_X + 1))
    e("s_mov_b32 s%d, 114688" % (S_X + 2))
    e("s_lshl_b32 s30, s27, 3")
    e("s_add_u32 s30, s30, s26")
    e("s_lshl_b32 s31, s30, 19")
    for srd in (S_K, S_V):
        e("s_add_u32 s%d, s%d, s31" % (srd, srd))
        e("s_addc_u32 s%d, s%d, 0" % (srd + 1, srd + 1))
        e("s_mov_b32 s%d, 524288" % (srd + 2))
    e("s_lshl_b32 s31, s26, 10")
    e("s_add_u32 s%d, s%d, s31" % (S_WQ, S_WQ))
    e("s_addc_u32 s%d, s%d, 0" % (S_WQ + 1, S_WQ + 1))
    e("s_sub_u32 s%d, 0x400000, s31" % (S_WQ + 2))
    e("s_lshl_b32 s31, s26, 19")
    e("s_add_u32 s%d, s%d, s31" % (S_WO, S_WO))
    e("s_addc_u32 s%d, s%d, 0" % (S_WO + 1, S_WO + 1))
    e("s_mov_b32 s%d, 524288" % (S_WO + 2))
    e("s_lshl_b32 s31, s28, 7")
    e("s_add_u32 s31, s31, s30")
    e("s_lshl_b32 s31, s31, 17")
    e("s_add_u32 s%d, s24, s31" % S_P)
    e("s_addc_u32 s%d, s25, 0" % (S_P + 1))
    e("s_mov_b32 s%d, 131072" % (S_P + 2))
    for srd in (S_X, S_K, S_V, S_WQ, S_WO, S_P):
        e("s_mov_b32 s%d, 0x20000" % (srd + 3))
    if stamps:
        e("s_mov_b32 s%d, s24" % S_WS)
        e("s_mov_b32 s%d, s25" % (S_WS + 1))
        e("s_mov_b32 s%d, %d" % (S_WS + 2, WS_BYTES))
        e("s_mov_b32 s%d, 0x20000" % (S_WS + 3))
    e("s_and_b32 s%d, s29, 3" % S_W)
    e("s_cmp_ge_u32 s29, 4")
    e("s_cbranch_scc1 L_B")
    gen_A(e, cfg)
    gen_B(e, cfg)
    e.label("L_end")
    e("s_endpgm")


A_OS0, A_OS1, A_Q, A_S, A_O = 64, 96, 128, 160, 192
A_F = 32
A_KA = 8
A_TA = 16
A_M, A_THR, A_L, A_T0, A_T1, A_T2, A_QA = 20, 21, 22, 23, 24, 25, 26
A_TB = 8
A_PA, A_PP = 12, 13
A_STG = 24


def a_normalize(e, dst):
    e("v_mov_b32 %s, %s" % (vr(A_T0), vr(A_L)))
    e("s_nop 1")
    e("v_permlane32_swap_b32 %s, %s" % (vr(A_T0), vr(A_L)))
    e("s_nop 1")
    e("v_add_f32 %s, %s, %s" % (vr(A_L), vr(A_L), vr(A_T0)))
    e("v_rcp_f32 %s, %s" % (vr(A_T0), vr(A_L)))
    e("s_nop 7")
    for j in range(32):
        e("v_mul_f32 %s, %s, %s" % (vr(A_O + 2 * j), vr(A_T0), vr(A_O + 2 * j)))
        e("v_mul_f32 %s, %s, %s" % (vr(A_O + 2 * j + 1), vr(A_T0), vr(A_O + 2 * j + 1)))
        e("v_cvt_pk_bf16_f32 %s, %s, %s" % (vr(dst + j), vr(A_O + 2 * j), vr(A_O + 2 * j + 1)))


def a_step(e, half, cfg):
    kbase = L_KV + (2 * half) * 16384
    vbase = L_KV + (2 * half + 1) * 16384
    ops = []
    for kt in range(2):
        for ks in range(8):
            ops.append(([("ds_read_b128", 0, 4, A_KA + ks, kbase + kt * 8192)], A_S + 16 * kt, A_Q + 4 * ks,
                        None if ks == 0 else A_S + 16 * kt))
    stream(e, ops, A_F, 8, 7)
    e("v_max3_f32 %s, %s, %s, %s" % (vr(A_T0), vr(A_S), vr(A_S + 1), vr(A_S + 2)))
    for j in range(3, 15, 2):
        e("v_max3_f32 %s, %s, %s, %s" % (vr(A_T0), vr(A_T0), vr(A_S + j), vr(A_S + j + 1)))
    e("s_nop 5")
    for j in range(15, 31, 2):
        e("v_max3_f32 %s, %s, %s, %s" % (vr(A_T0), vr(A_T0), vr(A_S + j), vr(A_S + j + 1)))
    e("v_max_f32 %s, %s, %s" % (vr(A_T0), vr(A_T0), vr(A_S + 31)))
    e("v_cmp_gt_f32 vcc, %s, %s" % (vr(A_T0), vr(A_THR)))
    e("s_cbranch_vccnz L_A_rescale%d" % half)
    e.label("L_A_back%d" % half)
    seq = []
    for j in range(32):
        seq.append(("sub", j))
        if j >= 1:
            seq.append(("exp", j - 1))
        if j >= 3:
            seq.append(("add", j - 3))
        if j >= 4 and j % 2 == 0:
            seq.append(("cvt", (j - 4) // 2))
    seq += [("exp", 31), ("add", 29), ("cvt", 14), ("add", 30), ("add", 31), ("cvt", 15)]
    for op, j in seq:
        if op == "sub":
            e("v_sub_f32 %s, %s, %s" % (vr(A_S + j), vr(A_S + j), vr(A_M)))
        elif op == "exp":
            e("v_exp_f32 %s, %s" % (vr(A_S + j), vr(A_S + j)))
        elif op == "add":
            e("v_add_f32 %s, %s, %s" % (vr(A_L), vr(A_L), vr(A_S + j)))
        else:
            e("v_cvt_pk_bf16_f32 %s, %s, %s" % (vr(A_S + j), vr(A_S + 2 * j), vr(A_S + 2 * j + 1)))
    e("s_barrier")
    ops = []
    for ks in range(4):
        for ct in range(4):
            ops.append((tr_reads(A_TA, ct, ks, vbase), A_O + 16 * ct, A_S + 4 * ks, A_O + 16 * ct))
    stream(e, ops, A_F, 8, 7)


def a_rescale(e, half):
    e.label("L_A_rescale%d" % half)
    e("v_mov_b32 %s, %s" % (vr(A_T1), vr(A_T0)))
    e("s_nop 1")
    e("v_permlane32_swap_b32 %s, %s" % (vr(A_T0), vr(A_T1)))
    e("s_nop 1")
    e("v_max3_f32 %s, %s, %s, %s" % (vr(A_T0), vr(A_T0), vr(A_T1), vr(A_M)))
    e("v_sub_f32 %s, %s, %s" % (vr(A_T1), vr(A_M), vr(A_T0)))
    e("v_exp_f32 %s, %s" % (vr(A_T1), vr(A_T1)))
    e("v_mov_b32 %s, %s" % (vr(A_M), vr(A_T0)))
    e("v_add_f32 %s, 0x41000000, %s" % (vr(A_THR), vr(A_T0)))
    e("v_mul_f32 %s, %s, %s" % (vr(A_L), vr(A_T1), vr(A_L)))
    for j in range(64):
        e("v_mul_f32 %s, %s, %s" % (vr(A_O + j), vr(A_T1), vr(A_O + j)))
    e("s_branch L_A_back%d" % half)


def gen_A(e, cfg):
    stpol = cfg.get("stpol", "")
    stamps = cfg.get("stamps", False)
    if cfg.get("codepf", True):
        e("s_getpc_b64 %s" % sr(S_PC, 2))
        e("s_lshl_b32 %s, %s, 13" % (sr(S_T0), sr(S_W)))
        e("v_lshlrev_b32 v1, 7, v0")
        e("v_add_u32 v1, %s, v1" % sr(S_T0))
        e("v_min_u32 v1, L_code_end-L_code_ref-4, v1")
        e("global_load_dword v2, v1, %s" % sr(S_PC, 2))
        e.label("L_code_ref")
    e("v_and_b32 v1, 0x13, v0")
    e("v_bfe_u32 v3, v0, 2, 1")
    e("v_lshl_or_b32 v1, v3, 3, v1")
    e("v_bfe_u32 v3, v0, 3, 1")
    e("v_lshl_or_b32 v1, v3, 2, v1")
    e("v_and_b32 v3, 15, v1")
    e("v_lshrrev_b32 v4, 5, v0")
    e("v_xor_b32 v3, v3, v4")
    e("v_lshlrev_b32 v3, 4, v3")
    e("v_lshl_add_u32 v1, v1, 8, v3")
    for ks in range(8):
        e("v_xor_b32 %s, 0x%x, v1" % (vr(A_KA + ks), ks << 5))
    emit_ta(e, A_TA, 1, 3, 4, 0)
    e("s_lshl_b32 %s, %s, 13" % (sr(S_T0), sr(S_W)))
    e("s_add_u32 %s, %s, %d" % (sr(S_T0), sr(S_T0), L_Q))
    e("v_lshl_add_u32 %s, v0, 4, %s" % (vr(A_QA), sr(S_T0)))
    for j in range(64):
        e("v_mov_b32 %s, 0" % vr(A_O + j))
    e("v_mov_b32 %s, 0" % vr(A_L))
    e("s_mov_b32 %s, 16" % sr(S_CNT))
    e.label("L_A_pro")
    e("s_barrier")
    e("s_sub_u32 %s, %s, 1" % (sr(S_CNT), sr(S_CNT)))
    e("s_cmp_lg_u32 %s, 0" % sr(S_CNT))
    e("s_cbranch_scc1 L_A_pro")
    e("s_mov_b32 %s, 0" % sr(S_ITEM))
    e.label("L_A_item")
    e("s_barrier")
    for f in range(8):
        e("ds_read_b128 %s, %s offset:%d" % (vr(A_Q + 4 * f, 4), vr(A_QA), f * 1024))
    e("s_cmp_eq_u32 %s, 0" % sr(S_ITEM))
    e("s_cbranch_scc1 L_A_go")
    a_normalize(e, A_S)
    e("s_cmp_eq_u32 %s, 4" % sr(S_ITEM))
    e("s_cbranch_scc1 L_A_tail")
    e("s_cmp_eq_u32 %s, 2" % sr(S_ITEM))
    e("s_cbranch_scc1 L_A_save1")
    e("s_cmp_eq_u32 %s, 3" % sr(S_ITEM))
    e("s_cbranch_scc1 L_A_save2")
    for j in range(32):
        e("v_mov_b32 %s, %s" % (vr(A_OS0 + j), vr(A_S + j)))
    e("s_branch L_A_go")
    e.label("L_A_save1")
    for j in range(32):
        e("v_mov_b32 %s, %s" % (vr(A_OS1 + j), vr(A_S + j)))
    e("s_branch L_A_go")
    e.label("L_A_save2")
    e("s_waitcnt lgkmcnt(0)")
    for f in range(8):
        e("ds_write_b128 %s, %s offset:%d" % (vr(A_QA), vr(A_S + 4 * f, 4), f * 1024))
    e.label("L_A_go")
    e("v_mov_b32 %s, 0xff800000" % vr(A_M))
    e("v_mov_b32 %s, 0xff800000" % vr(A_THR))
    e("s_mov_b32 %s, 4" % sr(S_CNT))
    e("s_waitcnt lgkmcnt(0)")
    e("s_branch L_A_body")
    e.raw(".p2align 3")
    e.label("L_A_loop")
    e("s_barrier")
    e.label("L_A_body")
    a_step(e, 0, cfg)
    e("s_barrier")
    a_step(e, 1, cfg)
    e("s_sub_u32 %s, %s, 1" % (sr(S_CNT), sr(S_CNT)))
    e("s_cmp_lg_u32 %s, 0" % sr(S_CNT))
    e("s_cbranch_scc1 L_A_loop")
    e("s_add_u32 %s, %s, 1" % (sr(S_ITEM), sr(S_ITEM)))
    e("s_branch L_A_item")
    a_rescale(e, 0)
    a_rescale(e, 1)
    e.label("L_A_tail")
    for ct in range(4):
        e("v_add_u32 %s, 0x10000, %s" % (vr(A_TB + ct), vr(A_TA + ct)))
    e("s_lshl_b32 %s, %s, 15" % (sr(S_T0), sr(S_W)))
    e("v_lshl_add_u32 %s, v0, 4, %s" % (vr(A_PA), sr(S_T0)))
    e("s_cmp_eq_u32 %s, 3" % sr(S_W))
    e("s_cselect_b32 %s, 16, 0" % sr(S_T0))
    e("v_and_b32 v1, %s, v0" % sr(S_T0))
    e("v_lshlrev_b32 v1, 27, v1")
    e("v_or_b32 %s, %s, v1" % (vr(A_PA), vr(A_PA)))
    e("v_mov_b32 %s, 0x80000000" % vr(A_PP))
    e("s_mov_b32 %s, 0" % sr(S_PO0))
    e("s_mov_b32 %s, 4096" % sr(S_PO1))
    e("s_mov_b32 %s, 0" % sr(S_T1))
    e("s_mov_b32 %s, 4" % sr(S_CNT))
    e("s_waitcnt lgkmcnt(0)")
    OH = [A_OS0, A_OS1, A_Q, A_S]
    ops = []
    for kt in range(8):
        slot = (4 + kt) & 7
        ta = A_TB if slot >= 4 else A_TA
        base = (slot & 3) * 16384
        for ct in range(4):
            for ks in range(4):
                b = OH[kt >> 1] + 16 * (kt & 1) + 4 * ks
                ops.append((tr_reads(ta, ct, ks, base), A_O + 16 * ct, b, None if (kt == 0 and ks == 0) else A_O + 16 * ct))
    LA = 7
    for i in range(LA):
        for (mn, sub, nr, addr, off) in ops[i][0]:
            e("%s %s, %s offset:%d" % (mn, vr(A_F + 4 * i + sub, nr), vr(addr), off))

    def epi(ct, addr, soff):
        c = ["v_cvt_pk_bf16_f32 %s, %s, %s" % (vr(A_STG + j), vr(A_O + 16 * ct + 2 * j), vr(A_O + 16 * ct + 2 * j + 1)) for j in range(8)]
        s = ["buffer_store_dwordx4 %s, %s, %s, %s offen offset:%d %s" % (vr(A_STG + 4 * k, 4), vr(addr), sr(S_P, 4), sr(soff), (ct & 1) * 2048 + k * 1024, stpol) for k in range(2)]
        return c, s

    fill = {}
    c, s = epi(3, A_PP, S_T1)
    fill[2] = c[:4]
    fill[3] = c[4:]
    fill[4] = [s[0]]
    fill[6] = [s[1]]
    fill[8] = ["v_mov_b32 %s, %s" % (vr(A_PP), vr(A_PA)), "s_mov_b32 %s, %s" % (sr(S_T1), sr(S_PO1))]
    for ct in range(3):
        c, s = epi(ct, A_PA, S_PO0 if ct < 2 else S_PO1)
        last = 112 + 4 * ct + 3
        fill.setdefault(last + 3, [])
        fill.setdefault(last + 4, [])
        fill[last + 3] += c[:4] + [s[0]]
        fill[last + 4] += c[4:] + [s[1]]
    e.raw(".p2align 3")
    e.label("L_A_op")
    stream(e, ops, A_F, 8, LA, pre_issued=LA, next_ops=ops, fill=fill, bar_after=set(range(15, 128, 16)))
    e("s_add_u32 %s, %s, 8192" % (sr(S_PO0), sr(S_PO0)))
    e("s_add_u32 %s, %s, 8192" % (sr(S_PO1), sr(S_PO1)))
    e("s_sub_u32 %s, %s, 1" % (sr(S_CNT), sr(S_CNT)))
    e("s_cmp_lg_u32 %s, 0" % sr(S_CNT))
    e("s_cbranch_scc1 L_A_op")
    e("s_nop 7")
    c, s = epi(3, A_PP, S_T1)
    for x in c + s:
        e(x)
    if stamps:
        e("s_waitcnt vmcnt(0)")
        e("s_barrier")
        e("s_memrealtime %s" % sr(S_ST + 2, 2))
        e("s_waitcnt lgkmcnt(0)")
        for j in range(4):
            e("v_mov_b32 v%d, s%d" % (4 + j, S_ST + j))
        e("s_lshl_b32 %s, s2, 4" % sr(S_T0))
        e("s_add_u32 %s, %s, %d" % (sr(S_T0), sr(S_T0), WS_BYTES - 65536))
        e("v_mov_b32 v3, %s" % sr(S_T0))
        e("buffer_store_dwordx4 v[4:7], v3, %s, 0 offen" % sr(S_WS, 4))
    e("s_endpgm")


B_X, B_ACC, B_F = 128, 64, 32
B_VK, B_VV, B_VWQ, B_VWO, B_TA, B_XA, B_QA = 4, 8, 9, 12, 16, 20, 21
B_T0, B_T1, B_T2 = 22, 23, 24
B_VX = B_X + 96
XREG = [0, 32768, L_SP, L_Q]


class Loads:
    def __init__(self):
        self.need = []

    def add(self, need):
        self.need.append(need)

    def wait_for(self, bar):
        last = max([i for i, n in enumerate(self.need) if n <= bar], default=-1)
        return len(self.need) - 1 - last


def gen_B(e, cfg):
    kvpol = cfg.get("kvpol", "nt")
    wpol = cfg.get("wpol", "nt")
    xpol = cfg.get("xpol", "nt")
    opol = cfg.get("opol", "nt")
    e.label("L_B")
    if cfg.get("bprio", 1):
        e("s_setprio %d" % cfg.get("bprio", 1))
    e("v_lshrrev_b32 v1, 4, v0")
    e("v_and_b32 v2, 15, v0")
    e("s_lshl_b32 %s, %s, 12" % (sr(S_M0KV), sr(S_W)))
    e("s_lshl_b32 %s, %s, 11" % (sr(S_M0W), sr(S_W)))
    e("s_add_u32 %s, %s, %d" % (sr(S_M0W), sr(S_M0W), L_W))
    e("s_lshl_b32 %s, %s, 13" % (sr(S_M0X), sr(S_W)))
    e("s_lshl_b32 %s, %s, 15" % (sr(S_T0), sr(S_W)))
    e("v_lshl_add_u32 %s, v1, 10, %s" % (vr(B_T0), sr(S_T0)))
    e("v_lshl_add_u32 %s, v1, 8, %s" % (vr(B_T1), sr(S_M0KV)))
    for j in range(4):
        e("v_add_u32 v3, %d, v1" % (4 * j))
        e("v_xor_b32 v3, v3, v2")
        e("v_lshl_add_u32 %s, v3, 4, %s" % (vr(B_VX + j), vr(B_T0)))
        if j:
            e("v_add_u32 %s, %d, %s" % (vr(B_VX + j), j * 3072, vr(B_VX + j)))
        e("v_add_u32 %s, 16384, %s" % (vr(B_VX + 4 + j), vr(B_VX + j)))
        e("v_lshl_add_u32 %s, v3, 4, %s" % (vr(B_VK + j), vr(B_T1)))
    e("v_lshlrev_b32 v3, 2, v1")
    e("v_xor_b32 v3, v3, v2")
    e("v_lshlrev_b32 v3, 4, v3")
    e("s_lshl_b32 %s, %s, 16" % (sr(S_T0), sr(S_W)))
    e("v_lshl_add_u32 %s, v1, 13, %s" % (vr(B_VWQ), sr(S_T0)))
    e("v_add_u32 %s, %s, v3" % (vr(B_VWQ), vr(B_VWQ)))
    e("v_add_u32 %s, %d, %s" % (vr(B_VWQ + 1), 4 * 8192 - 1024, vr(B_VWQ)))
    ld = Loads()

    def dma(voff, srd, soff, imm, pol):
        e("buffer_load_dwordx4 %s, %s, %s offen offset:%d %s lds" % (vr(voff), sr(srd, 4), soff, imm, pol))

    def x_half(jx, half):
        out = []
        out.append("s_add_u32 m0, %s, %d" % (sr(S_M0X), XREG[jx] + half * 4096))
        out.append("s_mov_b32 %s, %d" % (sr(S_T1), jx * 256))
        for j in range(4):
            out.append("buffer_load_dwordx4 %s, %s, %s offen offset:%d %s lds" % (vr(B_VX + 4 * half + j), sr(S_X, 4), sr(S_T1), j * 1024, xpol))
            ld.add(-16 + 4 * jx)
        return out

    def w_half(p):
        out = ["s_add_u32 m0, %s, %d" % (sr(S_M0W), (p & 3) * 8192), "s_nop 0"]
        for j in range(2):
            out.append("buffer_load_dwordx4 %s, %s, %s offen offset:%d %s lds" % (vr(B_VWQ + j), sr(S_WQ, 4), sr(S_WOFF), j * 1024, wpol))
            ld.add(p)
        if (p & 15) == 15:
            out.append("s_sub_u32 %s, %s, %d" % (sr(S_WOFF), sr(S_WOFF), 15 * 262144 - 256))
        else:
            out.append("s_add_u32 %s, %s, 262144" % (sr(S_WOFF), sr(S_WOFF)))
        return out

    def kv_tile(p):
        out = ["s_add_u32 m0, %s, %d" % (sr(S_M0KV), (p & 3) * 16384), "s_nop 0"]
        for j in range(4):
            if p & 1:
                out.append("buffer_load_dwordx4 %s, %s, %s offen offset:%d %s lds" % (vr(B_VV), sr(S_V, 4), sr(S_KVOFF), j * 1024, kvpol))
            else:
                out.append("buffer_load_dwordx4 %s, %s, %s offen offset:%d %s lds" % (vr(B_VK + j), sr(S_K, 4), sr(S_KVOFF), j * 1024, kvpol))
            ld.add(p)
        if p & 1:
            out.append("s_add_u32 %s, %s, 16384" % (sr(S_KVOFF), sr(S_KVOFF)))
        return out

    def wo_piece(t, js):
        out = ["s_add_u32 m0, %s, %d" % (sr(S_M0KV), ((4 + t) & 7) * 16384),
               "s_mov_b32 %s, %d" % (sr(S_T1), (t & 7) * 65536 + (t >> 3) * 256)]
        for j in js:
            out.append("buffer_load_dwordx4 %s, %s, %s offen offset:%d %s lds" % (vr(B_VWO + j), sr(S_WO, 4), sr(S_T1), j * 1024, opol))
            ld.add(max(64, 63 + t))
        return out

    def emit(lst):
        for s in lst:
            e(s)

    e("s_mov_b32 %s, 0" % sr(S_WOFF))
    e("s_mov_b32 %s, 0" % sr(S_KVOFF))
    emit(x_half(0, 0) + x_half(0, 1) + w_half(-16) + w_half(-15) + x_half(1, 0) + w_half(-14))
    e("v_add_u32 %s, %s, v3" % (vr(B_VV), vr(B_T1)))
    e("s_lshl_b32 %s, %s, 14" % (sr(S_T0), sr(S_W)))
    e("v_lshl_add_u32 %s, v1, 10, %s" % (vr(B_VWO), sr(S_T0)))
    e("v_add_u32 %s, %s, v3" % (vr(B_VWO), vr(B_VWO)))
    for j in range(1, 4):
        e("v_add_u32 %s, %d, %s" % (vr(B_VWO + j), j * 3072, vr(B_VWO)))
    emit_ta(e, B_TA, B_T0, B_T1, B_T2, L_W)
    e("v_and_b32 v1, 31, v0")
    e("v_and_b32 v2, 15, v0")
    e("v_lshrrev_b32 v3, 5, v0")
    e("v_xor_b32 v2, v2, v3")
    e("v_lshlrev_b32 v2, 4, v2")
    e("v_lshl_add_u32 v2, v1, 8, v2")
    e("v_add_u32 %s, %s, v2" % (vr(B_XA), sr(S_M0X)))
    e("s_add_u32 %s, %s, %d" % (sr(S_T0), sr(S_M0X), L_Q))
    e("v_lshl_add_u32 %s, v0, 4, %s" % (vr(B_QA), sr(S_T0)))
    e("s_mov_b32 %s, 0x3e0293ee" % sr(S_SCALE))

    def bar(p, extra=0):
        n = ld.wait_for(p + extra)
        e("s_waitcnt vmcnt(%d)" % min(n, 63))
        e("s_barrier")
        return n

    def qp_phase(p, loads):
        idx = p & 15
        if p < 0 and idx % 4 == 0:
            jx = idx // 4
            for ks in range(8):
                e("v_xor_b32 %s, 0x%x, %s" % (vr(B_T0), ks << 5, vr(B_XA)))
                if XREG[jx] >= 65536:
                    e("v_add_u32 %s, 0x%x, %s" % (vr(B_T0), XREG[jx], vr(B_T0)))
                e("ds_read_b128 %s, %s offset:%d" % (vr(B_X + 32 * jx + 4 * ks, 4), vr(B_T0), XREG[jx] if XREG[jx] < 65536 else 0))
            e("s_waitcnt lgkmcnt(0)")
        ops = []
        for kk in range(2):
            for ct in range(4):
                ops.append((tr_reads(B_TA, ct, kk, (p & 3) * 8192), B_ACC + 16 * ct, B_X + 4 * (2 * idx + kk),
                            None if (idx == 0 and kk == 0) else B_ACC + 16 * ct))
        groups, cur = [], []
        for s in loads:
            cur.append(s)
            if s.startswith("buffer_load"):
                groups.append(cur)
                cur = []
        if cur:
            if groups:
                groups[-1] += cur
            else:
                groups.append(cur)
        fill = {}
        for g, lst in enumerate(groups):
            fill.setdefault(min(7, g * 8 // max(len(groups), 8)), []).extend(lst)
        stream(e, ops, B_F, 8, 7, fill=fill)
        if idx == 15:
            e("s_nop 7")
            e("s_nop 3")
            for j in range(32):
                e("v_mul_f32 %s, %s, %s" % (vr(B_ACC + 2 * j), sr(S_SCALE), vr(B_ACC + 2 * j)))
                e("v_mul_f32 %s, %s, %s" % (vr(B_ACC + 2 * j + 1), sr(S_SCALE), vr(B_ACC + 2 * j + 1)))
                e("v_cvt_pk_bf16_f32 %s, %s, %s" % (vr(B_F + j), vr(B_ACC + 2 * j), vr(B_ACC + 2 * j + 1)))
                if j % 4 == 3:
                    e("ds_write_b128 %s, %s offset:%d" % (vr(B_QA), vr(B_F + j - 3, 4), (j // 4) * 1024))
            e("s_waitcnt lgkmcnt(0)")

    xs = {-16: (1, 1), -15: (2, 0), -13: (2, 1), -11: (3, 0), -9: (3, 1)}
    bar(-16)
    for p in range(-16, -3):
        loads = []
        if p in xs:
            loads += x_half(*xs[p])
        loads += w_half(p + 3)
        qp_phase(p, loads)
        bar(p + 1, extra=1 if p == -4 else 0)
    e("s_mov_b32 %s, 3" % sr(S_CNT))
    e.raw(".p2align 3")
    e.label("L_B_loop")
    for p in range(-3, 13):
        qp_phase(p if p >= 0 else p + 16, kv_tile(p + 3) + w_half(p + 3))
        e("s_waitcnt vmcnt(12)")
        if p == 12:
            e("s_sub_u32 %s, %s, 1" % (sr(S_CNT), sr(S_CNT)))
            e("s_cmp_lg_u32 %s, 0" % sr(S_CNT))
        e("s_barrier")
    e("s_cbranch_scc1 L_B_loop")
    ld.need = [46] * 6 + [47] * 6
    pre = [(2, j) for j in range(4)] + [(3, j) for j in range(4)] + [(0, j) for j in range(4)] + [(1, j) for j in range(4)]
    for p in range(45, 94):
        loads = []
        if p + 3 <= 63:
            loads += kv_tile(p + 3)
        if p <= 60:
            t, j = pre[p - 45]
            loads += wo_piece(t, [j])
        elif p - 57 <= 31:
            loads += wo_piece(p - 57, range(4))
        if p <= 47:
            qp_phase(p, loads)
        else:
            emit(loads)
        bar(p + 1)
    e("s_endpgm")
    e.label("L_code_end")


def gen_reduce(e, cfg):
    ldpol = cfg.get("rpol", "nt")
    K = "reduce_kernel"
    e.raw(".globl %s" % K)
    e.raw(".p2align 8")
    e.raw(".type %s,@function" % K)
    e.label(K)
    e("s_cmp_ge_u32 s2, 896")
    e("s_cbranch_scc1 L_rend")
    e("s_load_dwordx2 s[4:5], s[0:1], 80")
    e("s_load_dwordx2 s[6:7], s[0:1], 96")
    e("s_mul_i32 s8, s2, 2341")
    e("s_lshr_b32 s8, s8, 16")
    e("s_mul_i32 s9, s8, 28")
    e("s_sub_u32 s9, s2, s9")
    e("v_lshrrev_b32 v1, 6, v0")
    e("v_and_b32 v0, 63, v0")
    e("v_lshl_add_u32 v1, s9, 2, v1")
    e("v_lshrrev_b32 v2, 3, v1")
    e("v_and_b32 v3, 7, v1")
    e("v_and_b32 v4, 7, v0")
    e("v_lshrrev_b32 v5, 3, v0")
    e("v_lshl_add_u32 v6, v2, 3, v4")
    e("v_lshl_add_u32 v7, v3, 3, v5")
    e("v_lshrrev_b32 v8, 5, v6")
    e("v_lshlrev_b32 v8, 15, v8")
    e("v_lshl_add_u32 v8, v7, 9, v8")
    e("v_and_b32 v6, 31, v6")
    e("v_lshl_add_u32 v8, v6, 4, v8")
    e("s_waitcnt lgkmcnt(0)")
    e("s_lshl_b32 s10, s8, 20")
    e("s_add_u32 s12, s6, s10")
    e("s_addc_u32 s13, s7, 0")
    e("s_mov_b32 s14, 0x100000")
    e("s_mov_b32 s15, 0x20000")
    for j in range(8):
        e("s_mov_b32 s%d, %d" % (20 + j, j * 131072))
    for j in range(8):
        e("buffer_load_dwordx4 %s, v8, s[12:15], s%d offen %s" % (vr(16 + 4 * j, 4), 20 + j, ldpol))
    e("s_mov_b32 s16, s4")
    e("s_mov_b32 s17, s5")
    e("s_mov_b32 s18, 3670016")
    e("s_mov_b32 s19, 0x20000")
    e("s_and_b32 s10, s8, 15")
    e("s_mul_i32 s10, s10, %d" % (112 * 2048))
    e("s_lshr_b32 s11, s8, 4")
    e("s_lshl_b32 s11, s11, 10")
    e("s_add_u32 s10, s10, s11")
    e("v_lshl_add_u32 v9, v2, 3, v5")
    e("v_lshlrev_b32 v9, 11, v9")
    e("v_lshl_add_u32 v10, v3, 3, v4")
    e("v_lshl_add_u32 v9, v10, 4, v9")
    e("v_add_u32 v9, s10, v9")
    e("v_lshl_add_u32 v10, v4, 3, v5")
    e("v_lshlrev_b32 v10, 2, v10")
    e("s_mov_b32 s28, 0xffff0000")
    for j in range(8):
        e("s_waitcnt vmcnt(%d)" % (7 - j))
        for k in range(4):
            src = 16 + 4 * j + k
            if j == 0:
                e("v_lshlrev_b32 %s, 16, %s" % (vr(48 + 2 * k), vr(src)))
                e("v_and_b32 %s, s28, %s" % (vr(49 + 2 * k), vr(src)))
            else:
                e("v_lshlrev_b32 v11, 16, %s" % vr(src))
                e("v_and_b32 v12, s28, %s" % vr(src))
                e("v_add_f32 %s, %s, v11" % (vr(48 + 2 * k), vr(48 + 2 * k)))
                e("v_add_f32 %s, %s, v12" % (vr(49 + 2 * k), vr(49 + 2 * k)))
    for k in range(4):
        e("v_cvt_pk_bf16_f32 %s, %s, %s" % (vr(56 + k), vr(48 + 2 * k), vr(49 + 2 * k)))
    for k in range(4):
        e("ds_bpermute_b32 %s, v10, %s" % (vr(60 + k), vr(56 + k)))
    e("s_waitcnt lgkmcnt(0)")
    e("buffer_store_dwordx4 v[60:63], v9, s[16:19], 0 offen %s" % cfg.get("outpol", ""))
    e.label("L_rend")
    e("s_endpgm")


def kd(name, vgpr, sgpr):
    return """.amdhsa_kernel %s
  .amdhsa_next_free_vgpr %d
  .amdhsa_next_free_sgpr %d
  .amdhsa_accum_offset %d
  .amdhsa_group_segment_fixed_size 0
  .amdhsa_kernarg_size 104
  .amdhsa_user_sgpr_count 2
  .amdhsa_user_sgpr_kernarg_segment_ptr 1
  .amdhsa_system_sgpr_workgroup_id_x 1
.end_amdhsa_kernel
""" % (name, vgpr, sgpr, vgpr)


def gen(cfg):
    e = Em()
    e.raw(HEADER.rstrip("\n"))
    if not cfg.get("skipmain"):
        e.raw("; @launch kernel=main_kernel grid=(256,1,1) block=(512,1,1) lds=%d" % LDS_BYTES)
    if not cfg.get("skipreduce"):
        e.raw("; @launch kernel=reduce_kernel grid=(896,1,1) block=(256,1,1) lds=0")
    e.raw('.amdgcn_target "amdgcn-amd-amdhsa--gfx950"')
    e.raw(".text")
    gen_main(e, cfg)
    gen_reduce(e, cfg)
    e.raw('.section .rodata,"a"')
    e.raw(".p2align 6")
    e.raw(kd("main_kernel", 256, 96))
    e.raw(".p2align 6")
    e.raw(kd("reduce_kernel", 64, 40))
    return e.text()


if __name__ == "__main__":
    assert all((w * 2341) >> 16 == w // 28 for w in range(896 + 16))
    if len(sys.argv) > 2:
        cfgs = eval(open(sys.argv[2]).read())
        for k, v in cfgs.items():
            open("%s_%s.s" % (sys.argv[1], k), "w").write(gen(v))
        print(" ".join("%s_%s.s" % (sys.argv[1], k) for k in cfgs))
    else:
        open(sys.argv[1], "w").write(gen({}))
```

```python
import sys

NAME = "concat_heads__mha_block_cached__mha_block_cached__near_ridge"
WS_BYTES = 288882688
HEADER = open("header.txt").read()

L_KV = 0
L_W = 65536
L_Q = 131072
LDS_BYTES = 163840
FLAG_OFF = 32 << 20
XREG = [L_Q, 0, 32768, L_Q]

S_X, S_K, S_V, S_WQ, S_WO, S_P, S_FL, S_DBG, S_OUT = 36, 40, 44, 48, 52, 56, 60, 64, 68
S_W, S_T0, S_T1, S_T2, S_T3 = 72, 73, 74, 75, 76
S_KVOFF, S_WOFF, S_M0KV, S_HG, S_CNT, S_ITEM, S_PO, S_CH, S_M0X = 77, 78, 79, 80, 81, 82, 83, 84, 85
S_T4, S_BOUND, S_SIG, S_B, S_BR, S_G = 86, 87, 88, 89, 90, 91
S_SCALE = 92
S_T5, S_ROT = 94, 95
S_ST, S_SI, S_SA, S_WS = 96, 100, 4, 8


DOC = """;
; One workgroup per CU = (branch, batch b, group hg of 4 heads); every product is a transposed bf16 MFMA 16x16x32 whose
; B operand (query rows on the lanes) stays in registers and whose A operand (K, V^T, wq^T, wo^T) comes from LDS.
;   waves 0-3 (A): two 16-row query tiles each (wave 3: one).  Load x / first tiles, then per head S^T = K Q^T, softmax,
;                  Q^T of the next head, and the sum over the 8 head groups of this workgroup's 64 output columns.
; Hand-off between the 8 workgroups of a (branch, b): bf16 partial chunks in d_ws (sc1 stores -> vmcnt(0) -> barrier ->
; progress word; consumer: sc1 poll -> barrier -> sc1 loads).  Progress words are cleared by their owner in this launch
;"""


class Em:
    def __init__(self):
        self.L = []

    def __call__(self, s):
        self.L.append("    " + s)

    def many(self, lst):
        for s in lst:
            if s.endswith(":"):
                self.raw(s)
            else:
                self(s)

    def label(self, s):
        self.L.append(s + ":")

    def raw(self, s):
        self.L.append(s)

    def text(self):
        return "\n".join(self.L) + "\n"


def vr(a, n=1):
    return "v%d" % a if n == 1 else "v[%d:%d]" % (a, a + n - 1)


def sr(a, n=1):
    return "s%d" % a if n == 1 else "s[%d:%d]" % (a, a + n - 1)


def mf(d, a, b, c):
    return "v_mfma_f32_16x16x32_bf16 %s, %s, %s, %s" % (vr(d, 4), vr(a, 4), vr(b, 4), "0" if c is None else vr(c, 4))


def stream(e, ops, frag0, nfrag, la, pre_issued=0, next_ops=None, fill=None, bar_after=None, wevery=2, pre_read=None, mid=None):
    assert la < nfrag
    allops = list(ops) + (list(next_ops[:la]) if next_ops else [])
    n = len(ops)
    pos = {}
    cnt = [0]

    def rd(i):
        out = list(pre_read.get(i, [])) if pre_read else []
        out += ["%s %s, %s offset:%d" % (mn, vr(frag0 + 4 * (i % nfrag) + sub, nr), vr(addr), off)
                for (mn, sub, nr, addr, off) in allops[i][0]]
        cnt[0] += sum(1 for s in out if s.startswith("ds_"))
        pos[i] = cnt[0]
        return out

    issued = 0
    while issued < min(la, len(allops)):
        r = rd(issued)
        if issued >= pre_issued:
            e.many(r)
        issued += 1
    waited = -1
    for i in range(n):
        if i > waited:
            upto = 0 if i == 0 else min(i + wevery - 1, n - 1, issued - 1)
            e("s_waitcnt lgkmcnt(%d)" % min(14, cnt[0] - pos[upto]))
            waited = upto
        ms = [mf(d, frag0 + 4 * (i % nfrag), b, c) for (d, b, c) in ops[i][1]]
        if i & 1:
            ms.reverse()
        rs = []
        if issued < len(allops):
            rs = rd(issued)
            issued += 1
        if mid and i in mid:
            e.many(ms[:1] + rs[:1] + mid[i] + ms[1:] + rs[1:])
        elif len(rs) > 2 and len(ms) == 2:
            k = (len(rs) + 1) // 2
            e.many([ms[0]] + rs[:k] + [ms[1]] + rs[k:])
        else:
            while ms or rs:
                if ms:
                    e(ms.pop(0))
                if rs:
                    e(rs.pop(0))
        if fill and i in fill:
            e.many(fill[i])
        if bar_after and i in bar_after:
            e("s_barrier")


def tr_reads(ta, s, ks, base):
    return [("ds_read_b64_tr_b16", 2 * u, 2, ta + s, base + ks * 8192 + u * 4096) for u in range(2)]


def emit_ta(e, ta, t0, t1, base):
    e("v_lshrrev_b32 %s, 2, v0" % vr(t0))
    e("v_and_b32 %s, 7, %s" % (vr(t1), vr(t0)))
    e("v_lshlrev_b32 %s, 8, %s" % (vr(t0), vr(t0)))
    e("v_lshl_add_u32 %s, %s, 5, %s" % (vr(t0), vr(t1), vr(t0)))
    e("v_and_b32 %s, 3, v0" % vr(t1))
    e("v_lshl_add_u32 %s, %s, 3, %s" % (vr(t0), vr(t1), vr(t0)))
    if base:
        e("v_add_u32 %s, 0x%x, %s" % (vr(t0), base, vr(t0)))
    for s in range(8):
        e("v_xor_b32 %s, 0x%x, %s" % (vr(ta + s), s << 5, vr(t0)))


_uid = [0]


def stamp(e, cfg, cond=None):
    if not cfg.get("stamps") or cfg.get("_nt") != 1:
        return
    if cond is not None:
        _uid[0] += 1
        e("s_cmp_lg_u32 %s, %d" % (sr(S_ITEM), cond))
        e("s_cbranch_scc1 L_ns%d" % _uid[0])
        stamp(e, cfg)
        e.label("L_ns%d" % _uid[0])
        return
    e("s_memtime %s" % sr(S_SA, 2))
    e("s_memrealtime %s" % sr(S_SA + 2, 2))
    e("s_mov_b32 m0, %s" % sr(S_SI))
    e("s_waitcnt lgkmcnt(0)")
    e("v_writelane_b32 v6, %s, m0" % sr(S_SA))
    e("v_writelane_b32 v7, %s, m0" % sr(S_SA + 2))
    e("s_add_u32 %s, %s, 1" % (sr(S_SI), sr(S_SI)))


DIAG = [False]


def emit_srd(e, names):
    t = sr(S_T0)
    sel = {"X": (S_X, 4, 14), "K": (S_K, 6, 16), "V": (S_V, 8, 18), "WQ": (S_WQ, 10, 20), "WO": (S_WO, 12, 22)}

    def fin(srd, lo, size):
        e("s_add_u32 s%d, s%d, %s" % (srd, lo, t))
        e("s_addc_u32 s%d, s%d, 0" % (srd + 1, lo + 1))
        if size is not None:
            e("s_mov_b32 s%d, %d" % (srd + 2, size))
        e("s_mov_b32 s%d, 0x20000" % (srd + 3))

    e("s_cmp_lg_u32 %s, 0" % sr(S_BR))
    for nm in names:
        if nm in sel:
            srd, a, b = sel[nm]
            e("s_cselect_b32 s%d, s%d, s%d" % (srd, b, a))
            e("s_cselect_b32 s%d, s%d, s%d" % (srd + 1, b + 1, a + 1))
    for nm in names:
        if nm == "X":
            e("s_mul_i32 %s, %s, 114688" % (t, sr(S_B)))
            fin(S_X, S_X, 114688)
        elif nm in ("K", "V"):
            e("s_lshl_b32 %s, %s, 3" % (t, sr(S_B)))
            e("s_add_u32 %s, %s, %s" % (t, t, sr(S_HG)))
            e("s_lshl_b32 %s, %s, 19" % (t, t))
            fin(sel[nm][0], sel[nm][0], 524288)
        elif nm == "WQ":
            e("s_lshl_b32 %s, %s, 10" % (t, sr(S_HG)))
            e("s_sub_u32 s%d, 0x400000, %s" % (S_WQ + 2, t))
            fin(S_WQ, S_WQ, None)
        elif nm == "WO":
            e("s_lshl_b32 %s, %s, 19" % (t, sr(S_HG)))
            fin(S_WO, S_WO, 524288)
        elif nm == "P":
            e("s_lshl_b32 %s, %s, 20" % (t, sr(S_G)))
            fin(S_P, 24, 0x100000)
        elif nm == "FL":
            e("s_lshl_b32 %s, %s, 10" % (t, sr(S_G)))
            e("s_add_u32 %s, %s, %d" % (t, t, FLAG_OFF))
            fin(S_FL, 24, 1024)
        elif nm == "DBG":
            e("s_lshl_b32 %s, %s, 2" % (t, sr(S_G)))
            if DIAG[0]:
                e("s_add_u32 %s, %s, 128" % (t, t))
            fin(S_DBG, 34, 4)
        elif nm == "OUT":
            e("s_mul_i32 %s, %s, %d" % (t, sr(S_B), 112 * 2048))
            fin(S_OUT, 32, 112 * 2048)


def emit_voff(e, vk, vv, vwq, vx, vwo, t, kvsh=12):
    r4, c16, ce, co, a, b = [vr(t + i) for i in range(6)]
    e("v_lshrrev_b32 %s, 4, v0" % r4)
    e("v_and_b32 %s, 15, v0" % c16)
    e("v_lshlrev_b32 %s, 1, %s" % (ce, r4))
    e("v_xor_b32 %s, %s, %s" % (ce, ce, c16))
    e("v_xor_b32 %s, 8, %s" % (co, ce))
    if vx is not None:
        e("s_lshl_b32 %s, %s, 15" % (sr(S_T0), sr(S_W)))
        e("v_lshl_add_u32 %s, %s, 10, %s" % (a, r4, sr(S_T0)))
        for j in range(4):
            e("v_add_u32 %s, %d, %s" % (b, 4 * j, r4))
            e("v_xor_b32 %s, %s, %s" % (b, b, c16))
            e("v_lshl_add_u32 %s, %s, 4, %s" % (vr(vx + j), b, a))
            if j:
                e("v_add_u32 %s, %d, %s" % (vr(vx + j), j * 3072, vr(vx + j)))
            e("v_add_u32 %s, 16384, %s" % (vr(vx + 4 + j), vr(vx + j)))
    if vwq is not None:
        e("s_lshl_b32 %s, %s, 17" % (sr(S_T0), sr(S_W)))
        e("v_lshl_add_u32 %s, %s, 13, %s" % (a, r4, sr(S_T0)))
        for j in range(4):
            e("v_lshl_add_u32 %s, %s, 4, %s" % (vr(vwq + j), ce if j % 2 == 0 else co, a))
            if j:
                e("v_add_u32 %s, %d, %s" % (vr(vwq + j), j * (4 * 8192 - 1024), vr(vwq + j)))
    if vk is not None:
        e("s_lshl_b32 %s, %s, %d" % (sr(S_T0), sr(S_W), kvsh))
        e("v_lshl_add_u32 %s, %s, 8, %s" % (a, r4, sr(S_T0)))
        for j in range(4):
            e("v_add_u32 %s, %d, %s" % (b, 4 * j, r4))
            e("v_xor_b32 %s, %s, %s" % (b, b, c16))
            e("v_lshl_add_u32 %s, %s, 4, %s" % (vr(vk + j), b, a))
        e("v_lshl_add_u32 %s, %s, 4, %s" % (vr(vv), ce, a))
        e("v_lshl_add_u32 %s, %s, 4, %s" % (vr(vv + 1), co, a))
    if vwo is not None:
        e("s_lshl_b32 %s, %s, 14" % (sr(S_T0), sr(S_W)))
        e("v_lshl_add_u32 %s, %s, 10, %s" % (a, r4, sr(S_T0)))
        for j, c in enumerate((ce, co)):
            e("v_lshrrev_b32 %s, 3, %s" % (b, c))
            e("v_lshl_add_u32 %s, %s, 16, %s" % (vr(vwo + j), b, a))
            e("v_and_b32 %s, 7, %s" % (b, c))
            e("v_lshl_add_u32 %s, %s, 4, %s" % (vr(vwo + j), b, vr(vwo + j)))
        e("v_add_u32 %s, %d, %s" % (vr(vwo + 1), 3072, vr(vwo + 1)))
        e("v_add_u32 %s, %d, %s" % (vr(vwo + 2), 6144, vr(vwo)))
        e("v_add_u32 %s, %d, %s" % (vr(vwo + 3), 6144, vr(vwo + 1)))


def dma(voff, srd, soff, imm, pol):
    return "buffer_load_dwordx4 %s, %s, %s offen offset:%d %s lds" % (vr(voff), sr(srd, 4), soff, imm, pol)


class Loads:
    def __init__(self):
        self.need = []

    def add(self, need):
        self.need.append(need)
        return len(self.need) - 1

    def younger(self, idx):
        return len(self.need) - 1 - idx

    def wait_for(self, bar):
        last = max([i for i, n in enumerate(self.need) if n <= bar], default=-1)
        return len(self.need) - 1 - last


A_OS0, A_OS1, A_Q, A_S, A_O = 64, 96, 128, 160, 192
A_F = 32
A_KA, A_TA, A_NEGM, A_ONES = 8, 12, 20, 28
A_L, A_QA, A_FA, A_T0 = 2, 4, 5, 1
A_TB, A_PA, A_PP = 20, 2, 3
A_STG = [8, 28]
AP_VX, AP_VWQ, AP_VK, AP_VV, AP_T = 64, 72, 76, 80, 84

B_X, B_ACC, B_F = 128, 64, 32
B_VK, B_VV, B_VWQ, B_VWO, B_TA, B_XA, B_QA = 4, 8, 10, 14, 18, 26, 27
B_T0, B_T1, B_T2, B_T3 = 28, 29, 30, 31


def gen_entry(e, cfg):
    stamps = cfg.get("stamps", False)
    kvpol, wpol, xpol = cfg.get("kvpol", "nt"), cfg.get("wpol", ""), cfg.get("xpol", "")
    K = NAME + "_kernel"
    e.raw(".globl %s" % K)
    e.raw(".p2align 8")
    e.raw(".type %s,@function" % K)
    e.label(K)
    e("s_cmp_ge_u32 s2, 256")
    e("s_cbranch_scc1 L_end")
    if stamps:
        e("s_memrealtime %s" % sr(S_ST, 2))
    if cfg.get("badmap"):
        e("s_lshr_b32 s3, s2, 5")
        e("s_and_b32 s2, s2, 31")
        e("s_lshl_b32 s2, s2, 3")
        e("s_or_b32 s2, s2, s3")
    e("s_load_dwordx16 s[4:19], s[0:1], 0")
    e("s_load_dwordx4 s[20:23], s[0:1], 64")
    e("s_load_dwordx2 s[24:25], s[0:1], 96")
    e("s_load_dwordx4 s[32:35], s[0:1], 80")
    e("v_lshrrev_b32 v1, 6, v0")
    e("v_and_b32 v0, 63, v0")
    e("v_readfirstlane_b32 s29, v1")
    e("s_and_b32 s26, s2, 3")
    e("s_lshl_b32 s26, s26, 1")
    e("s_bfe_u32 s27, s2, 0x10003")
    e("s_or_b32 %s, s26, s27" % sr(S_HG))
    e("s_lshr_b32 %s, s2, 4" % sr(S_B))
    e("s_bfe_u32 %s, s2, 0x10002" % sr(S_BR))
    e("s_lshl_b32 %s, %s, 4" % (sr(S_G), sr(S_BR)))
    e("s_add_u32 %s, %s, %s" % (sr(S_G), sr(S_G), sr(S_B)))
    e("s_and_b32 %s, s29, 3" % sr(S_W))
    e("s_lshl_b32 %s, %s, 12" % (sr(S_M0KV), sr(S_W)))
    e("s_lshl_b32 %s, %s, 13" % (sr(S_M0X), sr(S_W)))
    def hashbits(dst, shifts, mask):
        e("s_lshr_b32 %s, s2, %d" % (dst, shifts[0]))
        for x in shifts[1:]:
            e("s_lshr_b32 s28, s2, %d" % x)
            e("s_xor_b32 %s, %s, s28" % (dst, dst))
        e("s_and_b32 %s, %s, %d" % (dst, dst, mask))

    kx, hx = cfg.get("kvrot", (2, 5)), cfg.get("hrot", (1,))
    if kx is None:
        e("s_mov_b32 s3, 0")
    else:
        hashbits("s3", kx, 7)
        e("s_lshl_b32 s3, s3, 14")
    if hx is None:
        e("s_mov_b32 %s, 0" % sr(S_ROT))
    else:
        hashbits(sr(S_ROT), hx, 3)
        e("s_lshl_b32 s28, %s, 17" % sr(S_ROT))
        e("s_or_b32 s3, s3, s28")
        e("s_lshl_b32 %s, %s, 8" % (sr(S_ROT), sr(S_ROT)))
    e("s_mov_b32 %s, %s" % (sr(S_WOFF), sr(S_ROT)))
    e("s_cmp_eq_u32 s29, 7")
    e("s_cbranch_scc1 L_B1")
    e("s_cmp_ge_u32 s29, 4")
    e("s_cbranch_scc1 L_B2")
    e("s_cmp_eq_u32 s29, 3")
    e("s_cbranch_scc1 L_P1")


def gen_pro(e, cfg, nt):
    stamps = cfg.get("stamps", False)
    kvpol, wpol, xpol = cfg.get("kvpol", "nt"), cfg.get("wpol", ""), cfg.get("xpol", "")
    e.label("L_P%d" % nt)
    cfg["_nt"] = nt
    emit_voff(e, None, None, AP_VWQ, AP_VX, None, AP_T)
    if cfg.get("wqpf"):
        e("v_lshrrev_b32 v1, 1, v0")
        e("v_lshlrev_b32 v1, 13, v1")
        e("v_and_b32 v2, 1, v0")
        e("v_lshl_add_u32 v1, v2, 7, v1")
        e("v_lshrrev_b32 v2, 4, v0")
        e("v_and_b32 v1, 0xe080, v1")
        e("v_lshl_add_u32 v1, v2, 24, v1")
    e("s_waitcnt lgkmcnt(0)")
    emit_srd(e, ["X", "WQ"])
    ld = Loads()
    if cfg.get("wqpf"):
        e("s_lshl_b32 %s, %s, 18" % (sr(S_T0), sr(S_B)))
        e("s_lshl_b32 %s, %s, 16" % (sr(S_T1), sr(S_W)))
        e("s_add_u32 %s, %s, %s" % (sr(S_T0), sr(S_T0), sr(S_T1)))
        e("buffer_load_dword v5, v1, %s, %s offen" % (sr(S_WQ, 4), sr(S_T0)))
        ld.add(100)

    stage = [0]

    def pdma(x):
        pc = cfg.get("pcap", [None, None, None, 7, 7, 7, 7, 7, 7])
        if isinstance(pc, (list, tuple)):
            pc = pc[stage[0]]
        if pc is not None:
            e("s_waitcnt vmcnt(%d)" % pc)
        e(x)

    def xh(jx, half):
        if half >= nt:
            return
        e("s_add_u32 m0, %s, %d" % (sr(S_M0X), XREG[jx] + half * 4096))
        e("s_mov_b32 %s, %d" % (sr(S_T1), jx * 256))
        for j in range(4):
            pdma(dma(AP_VX + 4 * half + j, S_X, sr(S_T1), j * 1024, xpol))
            ld.add(2 * jx)

    def wt(st, need):
        e("s_add_u32 m0, %s, %d" % (sr(S_M0KV), L_W + (st & 3) * 16384))
        e("s_nop 0")
        for j in range(4):
            pdma(dma(AP_VWQ + j, S_WQ, sr(S_WOFF), j * 1024, wpol))
            ld.add(need)
        e.many(w_advance(st))

    def kv(p):
        e("s_add_u32 m0, %s, %d" % (sr(S_M0KV), p * 16384))
        e("s_nop 0")
        for j in range(4):
            pdma(dma(AP_VV + (j & 1) if p else AP_VK + j, S_V if p else S_K, "s3", j * 1024, kvpol))
            ld.add(8)

    def c(st):
        stage[0] = st + 1
        e("s_waitcnt vmcnt(%d)" % ld.wait_for(st))
        e("s_barrier")
        if stamps == 4:
            stamp(e, cfg)

    xh(0, 0); xh(0, 1); wt(0, 0)
    emit_srd(e, ["K", "V", "WO", "P", "FL", "DBG"])
    if stamps:
        e("s_mov_b32 %s, 0" % sr(S_SI))
        e("v_mov_b32 v6, 0")
        e("v_mov_b32 v7, 0")
        stamp(e, cfg)
    wt(1, 1); xh(1, 0)
    c(0)
    xh(1, 1); wt(2, 2)
    c(1)
    wt(3, 3); xh(2, 0)
    emit_voff(e, AP_VK, AP_VV, None, None, None, AP_T, cfg.get("kvsh", 12))
    c(2)
    xh(2, 1); wt(4, 4)
    e("v_and_b32 v1, 15, v0")
    e("v_lshrrev_b32 v2, 4, v0")
    e("v_xor_b32 v2, v2, v1")
    e("v_lshlrev_b32 v2, 4, v2")
    e("v_lshl_add_u32 v1, v1, 8, v2")
    for ks in range(4):
        e("v_xor_b32 %s, 0x%x, v1" % (vr(A_KA + ks), ks << 6))
    c(3)
    wt(5, 5); xh(3, 0)
    emit_ta(e, A_TA, 1, 2, 0)
    c(4)
    xh(3, 1); wt(6, 6)
    e("s_add_u32 %s, %s, %d" % (sr(S_T0), sr(S_M0X), L_Q))
    e("v_lshl_add_u32 %s, v0, 4, %s" % (vr(A_QA), sr(S_T0)))
    for j in range(4):
        e("v_mov_b32 %s, 0x3f803f80" % vr(A_ONES + j))
    e("s_mov_b32 %s, 0x46800000" % sr(S_BOUND))
    e("s_mov_b32 %s, 0" % sr(S_ITEM))
    def clear_flag():
        e("s_lshl_b32 %s, %s, 7" % (sr(S_T0), sr(S_HG)))
        e("v_lshrrev_b32 v1, 5, v0")
        e("v_lshlrev_b32 v1, 24, v1")
        e("v_lshl_add_u32 v1, v0, 2, v1")
        e("v_add_u32 %s, %s, v1" % (vr(A_FA), sr(S_T0)))
        e("v_mov_b32 v1, 0")
        e("buffer_store_dword v1, %s, %s, 0 offen sc1" % (vr(A_FA), sr(S_FL, 4)))
        ld.add(8)

    c(5)
    wt(7, 7); kv(0)
    c(6)
    wt(0, 8)
    c(7)
    kv(1)
    e("s_waitcnt vmcnt(4)")
    if nt == 1:
        clear_flag()
    if nt == 1:
        e("v_lshlrev_b32 %s, 24, v0" % vr(A_OS0 + 26))
        e("v_mov_b32 %s, 1" % vr(A_OS0 + 27))
        e("s_and_b32 %s, %s, 7" % (sr(S_T5), sr(S_B)))
        if cfg.get("atom", 1) == 0:
            e("buffer_atomic_add %s, %s, %s, 0 offen sc1" % (vr(A_OS0 + 27), vr(A_OS0 + 26), sr(S_DBG, 4)))
    if cfg.get("aprio", 0):
        e("s_setprio %d" % cfg["aprio"])


def kvoff(gs, cfg):
    sh = cfg.get("kvsh", 12) - 12
    t = gs & 7
    lo = t & ((1 << sh) - 1)
    return (gs >> 3) * 131072 + (lo << 12) + ((t >> sh) << (14 + sh))


def w_advance(t):
    t += 1
    return ["s_xor_b32 %s, %s, %d" % (sr(S_WOFF), sr(S_ROT), (t & 7) * 524288 + (t >> 3 & 3) * 256)]


def a_qk(e, nt, half, first=False, pk=True, scale=True):
    kbase = L_KV + (2 * half) * 16384
    ops = []
    for ks in range(4):
        for sub in range(4):
            c0 = (lambda qt: None) if first else (lambda qt: A_NEGM + 4 * qt)
            ops.append(([("ds_read_b128", 0, 4, A_KA + ks, kbase + sub * 4096)],
                        [(A_S + 16 * qt + 4 * sub, A_Q + 16 * qt + 4 * ks, c0(qt) if ks == 0 else A_S + 16 * qt + 4 * sub)
                         for qt in range(nt)]))
    pre, fill = None, None
    if first:
        pre = {4 * ks: ["ds_read_b128 %s, %s offset:%d" % (vr(A_Q + 16 * qt + 4 * ks, 4), vr(A_QA), (4 * qt + ks) * 1024)
                        for qt in range(nt)] for ks in range(4)}
        fill = {i: ["v_pk_mul_f32 %s, %s, %s op_sel_hi:[0,1]" % (vr(A_O + 32 * qt + 2 * i, 2), vr(A_NEGM + 4 * qt, 2), vr(A_O + 32 * qt + 2 * i, 2))
                    for qt in range(nt)] for i in range(16)}
        if not pk:
            fill = {i: ["v_mul_f32 %s, %s, %s" % (vr(A_O + 32 * qt + 2 * i + j), vr(A_NEGM + 4 * qt), vr(A_O + 32 * qt + 2 * i + j))
                        for qt in range(nt) for j in range(2)] for i in range(16)}
    stream(e, ops, A_F, 8, 7, pre_read=pre, fill=fill if scale else None)


def a_exp(e, nt):
    order = [(qt, j) for blk in range(2) for qt in range(nt) for j in range(8 * blk, 8 * blk + 8)]

    def cvt(q2, j2):
        e("v_cvt_pk_bf16_f32 %s, %s, %s" % (vr(A_S + 16 * q2 + j2 // 2), vr(A_S + 16 * q2 + j2), vr(A_S + 16 * q2 + j2 + 1)))

    for i, (qt, j) in enumerate(order):
        e("v_exp_f32 %s, %s" % (vr(A_S + 16 * qt + j), vr(A_S + 16 * qt + j)))
        if i >= 2 and i % 2 == 0:
            cvt(*order[i - 2])
    e("s_nop 0")
    cvt(*order[-2])
    if nt == 1:
        e("s_nop 0")
    for blk in range(2):
        for qt in range(nt):
            e(mf(A_F + 4 * qt, A_ONES, A_S + 16 * qt + 4 * blk, None if blk == 0 else A_F + 4 * qt))
    e("s_nop 7")


def a_pv(e, nt, half, first=False):
    vbase = L_KV + (2 * half + 1) * 16384
    ops = []
    for ks in range(2):
        for s in range(8):
            ops.append((tr_reads(A_TA, s, ks, vbase),
                        [(A_O + 32 * qt + 4 * s, A_S + 16 * qt + 4 * ks, None if (first and ks == 0) else A_O + 32 * qt + 4 * s)
                         for qt in range(nt)]))
    stream(e, ops, A_F, 8, 7)


def a_rowmax(e, t, u, S, floor):
    e("v_max3_f32 %s, %s, %s, %s" % (vr(t), vr(S), vr(S + 1), vr(S + 2)))
    for j in range(3, 15, 2):
        e("v_max3_f32 %s, %s, %s, %s" % (vr(t), vr(t), vr(S + j), vr(S + j + 1)))
    if floor:
        e("v_max3_f32 %s, %s, %s, 0" % (vr(t), vr(t), vr(S + 15)))
    else:
        e("v_max_f32 %s, %s, %s" % (vr(t), vr(t), vr(S + 15)))
    for sw in ("v_permlane32_swap_b32", "v_permlane16_swap_b32"):
        e("v_mov_b32 %s, %s" % (vr(u), vr(t)))
        e("s_nop 1")
        e("%s %s, %s" % (sw, vr(t), vr(u)))
        e("s_nop 1")
        e("v_max_f32 %s, %s, %s" % (vr(t), vr(t), vr(u)))


def a_step(e, nt, half, cfg):
    P = "L_A%d" % nt
    a_qk(e, nt, half)
    e("s_nop %d" % (1 if nt == 2 else 4))
    e.label("%s_exp%d" % (P, half))
    a_exp(e, nt)
    if nt == 2:
        e("v_max_f32 %s, %s, %s" % (vr(A_T0), vr(A_F), vr(A_F + 4)))
        e("v_cmp_lt_f32 vcc, %s, %s" % (sr(S_BOUND), vr(A_T0)))
    else:
        e("v_cmp_lt_f32 vcc, %s, %s" % (sr(S_BOUND), vr(A_F)))
    e("s_cbranch_vccnz %s_slow%d" % (P, half))
    for qt in range(nt):
        e("v_add_f32 %s, %s, %s" % (vr(A_L + qt), vr(A_L + qt), vr(A_F + 4 * qt)))
    e("s_barrier")
    if cfg.get("stamps") == 5:
        stamp(e, cfg, cfg.get("stitem", 2))
    a_pv(e, nt, half)


def a_slow(e, nt, half):
    P = "L_A%d" % nt
    e.label("%s_slow%d" % (P, half))
    a_qk(e, nt, half)
    e("s_nop 7")
    for qt in range(nt):
        t, u = A_F + 4 * qt, A_F + 4 * qt + 1
        S = A_S + 16 * qt
        a_rowmax(e, t, u, S, True)
        e("v_exp_f32 %s, -%s" % (vr(u), vr(t)))
        for j in range(4):
            e("v_sub_f32 %s, %s, %s" % (vr(A_NEGM + 4 * qt + j), vr(A_NEGM + 4 * qt + j), vr(t)))
        for j in range(16):
            e("v_sub_f32 %s, %s, %s" % (vr(S + j), vr(S + j), vr(t)))
        e("v_mul_f32 %s, %s, %s" % (vr(A_L + qt), vr(u), vr(A_L + qt)))
        for j in range(32):
            e("v_mul_f32 %s, %s, %s" % (vr(A_O + 32 * qt + j), vr(u), vr(A_O + 32 * qt + j)))
    e("s_branch %s_exp%d" % (P, half))


def gen_A(e, cfg, nt):
    P = "L_A%d" % nt
    stpol = cfg.get("stpol", "sc1")
    stamps = cfg.get("stamps", False)
    e.label(P)

    def pack(dst):
        for j in range(16 * nt):
            e("v_cvt_pk_bf16_f32 %s, %s, %s" % (vr(dst + j), vr(A_O + 2 * j), vr(A_O + 2 * j + 1)))

    if cfg.get("peel0", True):
        e("s_barrier")
        stamp(e, cfg)
        a_qk(e, nt, 0, first=True, scale=False)
        e("s_mov_b32 %s, 4" % sr(S_CNT))
        e("s_nop 5")
        e("s_branch %s_go" % P)
    e.label(P + "_item")
    e("s_barrier")
    stamp(e, cfg)
    for qt in range(nt):
        e("v_rcp_f32 %s, %s" % (vr(A_NEGM + 4 * qt), vr(A_L + qt)))
    e("s_cmp_eq_u32 %s, 4" % sr(S_ITEM))
    e("s_cbranch_scc1 %s_tail" % P)
    a_qk(e, nt, 0, first=True, pk=cfg.get("pkA", False))
    e("s_mov_b32 %s, 4" % sr(S_CNT))
    e("s_cmp_eq_u32 %s, 1" % sr(S_ITEM))
    e("s_cbranch_scc1 %s_save0" % P)
    e("s_cmp_eq_u32 %s, 2" % sr(S_ITEM))
    e("s_cbranch_scc1 %s_save1" % P)
    e("s_cmp_eq_u32 %s, 3" % sr(S_ITEM))
    e("s_cbranch_scc1 %s_save2" % P)
    e("s_nop 3")
    e.label(P + "_go")
    chains = []
    for qt in range(nt):
        x = Em()
        t, u = A_NEGM + 4 * qt, A_NEGM + 4 * qt + 2
        a_rowmax(x, t, u, A_S + 16 * qt, False)
        chains.append([l.strip() for l in x.L])
    for k in range(len(chains[0])):
        if chains[0][k].startswith("s_nop"):
            e("s_nop %d" % (2 - nt))
        else:
            e.many([c[k] for c in chains])
    for qt in range(nt):
        t, S = A_NEGM + 4 * qt, A_S + 16 * qt
        if cfg.get("pkS", False):
            for j in range(8):
                e("v_pk_add_f32 %s, %s, %s op_sel_hi:[1,0] neg_lo:[0,1] neg_hi:[0,1]" % (vr(S + 2 * j, 2), vr(S + 2 * j, 2), vr(t, 2)))
        else:
            for j in range(16):
                e("v_sub_f32 %s, %s, %s" % (vr(S + j), vr(S + j), vr(t)))
        for j in (1, 2, 3, 0):
            e("v_sub_f32 %s, 0, %s" % (vr(t + j), vr(t)))
    e("s_waitcnt lgkmcnt(0)")
    a_exp(e, nt)
    for qt in range(nt):
        e("v_mov_b32 %s, %s" % (vr(A_L + qt), vr(A_F + 4 * qt)))
    e("s_waitcnt vmcnt(%d)" % (2 - nt if cfg.get("atom", 1) == 0 else 0))
    e("s_barrier")
    if stamps == 5:
        stamp(e, cfg, cfg.get("stitem", 2))
    a_pv(e, nt, 0, first=True)
    e("s_branch %s_mid" % P)
    e.label(P + "_save0")
    pack(A_OS0)
    e("s_branch %s_go" % P)
    e.label(P + "_save1")
    pack(A_OS1)
    e("s_branch %s_go" % P)
    e.label(P + "_save2")
    pack(A_F)
    for f in range(4 * nt):
        e("ds_write_b128 %s, %s offset:%d" % (vr(A_QA), vr(A_F + 4 * f, 4), f * 1024))
    e("s_branch %s_go" % P)
    e.raw(".p2align 3")
    e.label(P + "_loop")
    e("s_barrier")
    if stamps == 2:
        stamp(e, cfg)
    if stamps == 5:
        stamp(e, cfg, cfg.get("stitem", 2))
    a_step(e, nt, 0, cfg)
    e.label(P + "_mid")
    e("s_barrier")
    if nt == 1 and cfg.get("atom", 1) == 1:
        e("s_sub_u32 %s, %s, 1" % (sr(S_T5), sr(S_T5)))
        e("s_cbranch_scc0 %s_noadd" % P)
        e("buffer_atomic_add %s, %s, %s, 0 offen sc1" % (vr(A_OS0 + 27), vr(A_OS0 + 26), sr(S_DBG, 4)))
        e.label(P + "_noadd")
    if stamps == 5:
        stamp(e, cfg, cfg.get("stitem", 2))
    a_step(e, nt, 1, cfg)
    e("s_sub_u32 %s, %s, 1" % (sr(S_CNT), sr(S_CNT)))
    e("s_cmp_lg_u32 %s, 0" % sr(S_CNT))
    e("s_cbranch_scc1 %s_loop" % P)
    e("s_add_u32 %s, %s, 1" % (sr(S_ITEM), sr(S_ITEM)))
    e("s_branch %s_item" % P)
    a_slow(e, nt, 0)
    a_slow(e, nt, 1)
    e.label(P + "_tail")
    for f in range(4 * nt):
        e("ds_read_b128 %s, %s offset:%d" % (vr(A_Q + 4 * f, 4), vr(A_QA), f * 1024))
    for qt in range(nt):
        for i in range(16):
            if cfg.get("pkT", True):
                e("v_pk_mul_f32 %s, %s, %s op_sel_hi:[0,1]" % (vr(A_O + 32 * qt + 2 * i, 2), vr(A_NEGM + 4 * qt, 2), vr(A_O + 32 * qt + 2 * i, 2)))
            else:
                for j in range(2):
                    e("v_mul_f32 %s, %s, %s" % (vr(A_O + 32 * qt + 2 * i + j), vr(A_NEGM + 4 * qt), vr(A_O + 32 * qt + 2 * i + j)))
    for s in range(8):
        e("v_add_u32 %s, 0x10000, %s" % (vr(A_TB + s), vr(A_TA + s)))
    OH = [A_OS0, A_OS1, A_Q, A_S]
    ops = []
    for t in range(8):
        slot = (4 + t) & 7
        ta = A_TB if slot >= 4 else A_TA
        base = (slot & 3) * 16384
        hf, hh = t >> 2, t & 3
        for kk in range(4):
            for c in range(4):
                d = A_O + 32 * hf + 4 * c
                ops.append((tr_reads(ta, 4 * (kk >> 1) + c, kk & 1, base),
                            [(d + 16 * qt, OH[hh] + 16 * qt + 4 * kk, None if (hh == 0 and kk == 0) else d + 16 * qt) for qt in range(nt)]))
    LA = 7
    e("s_waitcnt lgkmcnt(0)")
    if cfg.get("tailprio", 2):
        e("s_setprio %d" % cfg.get("tailprio", 2))
    for i in range(LA):
        for (mn, sub, nr, addr, off) in ops[i][0]:
            e("%s %s, %s offset:%d" % (mn, vr(A_F + 4 * i + sub, nr), vr(addr), off))
    pack(A_S)
    e("v_lshl_add_u32 %s, v0, 4, %s" % (vr(A_PA), sr(S_M0KV)))
    e("v_mov_b32 %s, 0x80000000" % vr(A_PP))
    e("s_mov_b32 %s, %s" % (sr(S_CH), sr(S_HG)))
    e("s_lshl_b32 %s, %s, 14" % (sr(S_T2), sr(S_HG)))
    e("s_mov_b32 %s, 0" % sr(S_PO))
    e("s_mov_b32 %s, 0" % sr(S_SIG))
    e("s_mov_b32 %s, 4" % sr(S_CNT))
    if stamps == 3:
        stamp(e, cfg)

    def nextchunk():
        return ["s_add_u32 %s, %s, 1" % (sr(S_CH), sr(S_CH)), "s_and_b32 %s, %s, 7" % (sr(S_CH), sr(S_CH)),
                "s_lshl_b32 %s, %s, 17" % (sr(S_PO), sr(S_CH)), "s_add_u32 %s, %s, %s" % (sr(S_PO), sr(S_PO), sr(S_T2))]

    fill, mid = {}, {}
    sig = cfg.get("sigtile", 3)
    for hf, addr, at in ((1, A_PP, 0), (0, A_PA, 64)):
        for k in range(2 * nt):
            stg, src = A_STG[k & 1], A_O + 32 * hf + 8 * k
            c = ["v_cvt_pk_bf16_f32 %s, %s, %s" % (vr(stg + (j ^ (2 * hf))), vr(src + 2 * j), vr(src + 2 * j + 1)) for j in range(4)]
            stx = "buffer_store_dwordx4 %s, %s, %s, %s offen offset:%d %s" % (vr(stg, 4), vr(addr), sr(S_P, 4), sr(S_PO), k * 1024, stpol)
            if cfg.get("epi", 0) == 0:
                p0 = at + 3 + 3 * k
                fill[p0] = c[:2]
                fill[p0 + 1] = c[2:]
                fill[p0 + 2] = [stx]
            elif cfg["epi"] == 1:
                p0 = at + 3 + 4 * k
                for j in range(4):
                    mid[p0 + j] = [c[j]]
                fill[p0 + 3] = [stx]
            elif cfg["epi"] == 2:
                p0 = at + 3 + 3 * k
                for j in range(2):
                    mid[p0 + j] = [c[2 * j]]
                    fill[p0 + j] = [c[2 * j + 1]]
                mid[p0 + 2] = [stx]
        for j, x in enumerate(nextchunk()):
            fill[at + 20 + j] = [x]
        fill[at + 16 * sig - 1] = [] if cfg.get("d_nowait") else ["s_waitcnt vmcnt(0)"]
        if nt == 1:
            fill[at + 16 * sig] = ["v_mov_b32 v1, %s" % sr(S_SIG), "s_add_u32 %s, %s, 1" % (sr(S_SIG), sr(S_SIG)),
                                   "buffer_store_dword v1, %s, %s, 0 offen sc1" % (vr(A_FA), sr(S_FL, 4))]
    fill[26] = ["v_mov_b32 %s, %s" % (vr(A_PP), vr(A_PA))]
    fill[124] = ["s_sub_u32 %s, %s, 1" % (sr(S_CNT), sr(S_CNT))]
    fill[125] = ["s_cmp_lg_u32 %s, 0" % sr(S_CNT)]
    e.raw(".p2align 3")
    e.label(P + "_op")
    stream(e, ops, A_F, 8, LA, pre_issued=LA, next_ops=ops, fill=fill, bar_after=set(range(15, 128, 16)), mid=mid, wevery=cfg.get("opw", 2))
    if stamps == 3:
        stamp(e, cfg)
        e("s_cmp_lg_u32 %s, 0" % sr(S_CNT))
    e("s_cbranch_scc1 %s_op" % P)
    e("s_nop 7")
    for f in range(4 * nt):
        e("ds_write_b128 %s, %s offset:%d" % (vr(A_QA), vr(A_O + 32 + 4 * f, 4), f * 1024))
    e("s_waitcnt lgkmcnt(0)")
    e("s_barrier")
    if stamps:
        stamp(e, cfg)
        e("s_waitcnt vmcnt(0)")
        e("s_barrier")
        stamp(e, cfg)
        e("s_cmp_lg_u32 %s, 3" % sr(S_W))
        e("s_cbranch_scc1 L_end")
        e("s_mov_b32 s%d, s24" % S_WS)
        e("s_mov_b32 s%d, s25" % (S_WS + 1))
        e("s_mov_b32 s%d, %d" % (S_WS + 2, WS_BYTES))
        e("s_mov_b32 s%d, 0x20000" % (S_WS + 3))
        e("s_lshl_b32 %s, s2, 9" % sr(S_T0))
        e("s_add_u32 %s, %s, %d" % (sr(S_T0), sr(S_T0), WS_BYTES - 65536 - 131072))
        e("v_lshl_add_u32 v3, v0, 3, %s" % sr(S_T0))
        e("buffer_store_dwordx2 v[6:7], v3, %s, 0 offen" % sr(S_WS, 4))
        e("s_memrealtime %s" % sr(S_ST + 2, 2))
        e("s_waitcnt lgkmcnt(0)")
        for j in range(4):
            e("v_mov_b32 v%d, s%d" % (8 + j, S_ST + j))
        e("s_lshl_b32 %s, s2, 4" % sr(S_T0))
        e("s_add_u32 %s, %s, %d" % (sr(S_T0), sr(S_T0), WS_BYTES - 65536))
        e("v_mov_b32 v3, %s" % sr(S_T0))
        e("buffer_store_dwordx4 v[8:11], v3, %s, 0 offen" % sr(S_WS, 4))
        if cfg.get("diag"):
            e("s_mov_b32 s12, s34")
            e("s_mov_b32 s13, s35")
            e("s_mov_b32 s14, 64")
            e("s_mov_b32 s15, 0x20000")
            e("v_lshlrev_b32 v12, 24, v0")
            e("v_not_b32 v13, v8")
            e("buffer_atomic_umax v10, v12, s[12:15], 0 offen offset:56 sc1")
            e("buffer_atomic_umax v13, v12, s[12:15], 0 offen offset:60 sc1")
            e("s_cmp_lg_u32 s2, 0")
            e("s_cbranch_scc1 L_end")
            e("s_mov_b32 s14, 56")
            e("v_sub_u32 v14, v7, v8")
            e("v_lshlrev_b32 v12, 2, v0")
            e("buffer_atomic_add v14, v12, s[12:15], 0 offen sc1")
    e("s_endpgm")


def gen_B(e, cfg, nt):
    P = "L_B%d" % nt
    kvpol, wpol, opol = cfg.get("kvpol", "nt"), cfg.get("wpol", ""), cfg.get("opol", "")
    e.label(P)
    if cfg.get("bprio", 0):
        e("s_setprio %d" % cfg["bprio"])
    if nt == 1 and cfg.get("codepf", True):
        e("s_getpc_b64 s[30:31]")
        e.label("L_code_ref")
        e("s_sub_u32 s30, s30, L_code_ref-%s_kernel" % NAME)
        e("s_subb_u32 s31, s31, 0")
        e("s_lshr_b32 %s, s2, 3" % sr(S_T0))
        e("s_mul_i32 %s, %s, 22" % (sr(S_T0), sr(S_T0)))
        e("v_and_b32 v1, 31, v0")
        e("v_add_u32 v1, %s, v1" % sr(S_T0))
        e("v_lshlrev_b32 v1, 7, v1")
        e("v_min_u32 v1, L_end-%s_kernel, v1" % NAME)
        e("global_load_dword %s, v1, s[30:31]" % vr(B_X + 64))
    emit_voff(e, B_VK, B_VV, B_VWQ, None, B_VWO, B_F, cfg.get("kvsh", 12))
    emit_ta(e, B_TA, B_T0, B_T1, L_W)
    e("v_and_b32 v1, 15, v0")
    e("v_lshrrev_b32 v2, 5, v0")
    e("v_bfe_u32 v3, v0, 4, 1")
    e("v_xor_b32 %s, v2, v1" % vr(B_T0))
    e("v_lshlrev_b32 %s, 4, %s" % (vr(B_T0), vr(B_T0)))
    e("v_lshl_add_u32 %s, v1, 8, %s" % (vr(B_T0), vr(B_T0)))
    e("v_lshl_add_u32 %s, v3, 3, %s" % (vr(B_T0), vr(B_T0)))
    e("v_add_u32 %s, %s, %s" % (vr(B_XA), sr(S_M0X), vr(B_T0)))
    e("v_add_u32 %s, 0x%x, %s" % (vr(B_T3), L_Q, vr(B_XA)))
    e("s_add_u32 %s, %s, %d" % (sr(S_T0), sr(S_M0X), L_Q))
    e("v_lshl_add_u32 %s, v2, 8, %s" % (vr(B_QA), sr(S_T0)))
    e("v_lshl_add_u32 %s, v1, 4, %s" % (vr(B_QA), vr(B_QA)))
    e("v_lshl_add_u32 %s, v3, 3, %s" % (vr(B_QA), vr(B_QA)))
    e("s_mov_b32 %s, 0x3e0293ee" % sr(S_SCALE))
    e("s_mov_b32 %s, 0x3e0293ee" % sr(S_SCALE + 1))
    e.many(w_advance(8))
    e("s_and_b32 %s, s3, 0x60000" % sr(S_ITEM))
    e("s_xor_b32 %s, s3, %d" % (sr(S_KVOFF), kvoff(1, cfg)))
    e("s_waitcnt lgkmcnt(0)")
    emit_srd(e, ["K", "V", "WQ", "WO", "P", "FL", "DBG", "OUT"])

    KM = ["s3"] * 4
    for i, sh in enumerate(cfg.get("kvrot2", [])):
        d = "s%d" % (4 + i)
        e("s_lshr_b32 %s, s2, %d" % (d, sh[0]))
        for x in sh[1:]:
            e("s_lshr_b32 s28, s2, %d" % x)
            e("s_xor_b32 %s, %s, s28" % (d, d))
        e("s_and_b32 %s, %s, 7" % (d, d))
        e("s_lshl_b32 %s, %s, 14" % (d, d))
        e("s_or_b32 %s, %s, %s" % (d, d, sr(S_ITEM)))
        KM[1 + i] = d

    H0 = 2

    def wlast(q):
        return wuse(q) if H0 == 4 else 2 * q

    def wuse(q):
        return 2 * q

    def piece(kind, q, j):
        if kind == "kv":
            ins = dma(B_VV + (j & 1), S_V, sr(S_KVOFF), j * 1024, kvpol) if q & 1 else dma(B_VK + j, S_K, sr(S_KVOFF), j * 1024, kvpol)
            post = ["s_xor_b32 %s, %s, %d" % (sr(S_KVOFF), KM[((q + 1) >> 4) & 3], kvoff((q + 1) // 2, cfg))] if (q & 1 and j == 3) else []
            return ((q & 3) * 16384, [], ins, post, q, q - 3)
        if kind == "w":
            return (L_W + (q & 3) * 16384, [], dma(B_VWQ + j, S_WQ, sr(S_WOFF), j * 1024, wpol),
                    w_advance(q + 8) if j == 3 else [], wuse(q), wlast(q - 4) + 1)
        if kind == "wo":
            setup = ["s_add_u32 %s, %s, %d" % (sr(S_T1), sr(S_HG), 1 + (q >> 2)), "s_and_b32 %s, %s, 7" % (sr(S_T1), sr(S_T1)),
                     "s_lshl_b32 %s, %s, 7" % (sr(S_T1), sr(S_T1)), "s_or_b32 %s, %s, %s" % (sr(S_T1), sr(S_T1), sr(S_ITEM)), "s_xor_b32 %s, %s, %d" % (sr(S_T1), sr(S_T1), (q & 3) * 131072)] if j == 0 else []
            return (((4 + q) & 7) * 16384, setup, dma(B_VWO + j, S_WO, sr(S_T1), j * 1024, opol), [], max(64, 63 + q),
                    wlast(20 + q) + 1 if q < 4 else max(57 + q, cfg.get("wostart", 62)))

    seq = []
    for q in range(0, 64):
        seq += [piece("kv", q, j) for j in range(4)]
        if q <= 46:
            seq += [piece("w", (q + 1) // 2, j) for j in ((0, 1) if q & 1 else (2, 3))]
        elif q >= 48:
            seq.append(piece("wo", (q - 48) // 4, (q - 48) % 4))
    kv_end = len(seq)
    pfph = cfg.get("pfphase", 62)
    def pf_piece(x, ph, part=None):
        setup = ["s_xor_b32 %s, %s, %d" % (sr(S_T2), sr(S_B), x), "s_lshl_b32 %s, %s, 15" % (sr(S_T2), sr(S_T2)),
                 "s_add_u32 %s, %s, %s" % (sr(S_T2), sr(S_T2), sr(S_M0X)), "v_lshlrev_b32 v1, 7, v0"]
        if part is not None:
            setup += ["v_lshrrev_b32 v3, 4, v0", "v_xor_b32 v3, %d, v3" % part, "v_lshl_add_u32 v1, v3, 24, v1"]
        return (None, setup, "buffer_load_dword v2, v1, %s, %s offen" % (sr(S_WO, 4), sr(S_T2)), [], 1000, ph)

    pfs = [pf_piece(x, pfph) for x in cfg.get("pfx", [0])]
    for part, q in enumerate(cfg.get("pfq", [])):
        at = max(i for i, x in enumerate(seq) if x[4] == q and x[5] == q - 3) + 1
        seq.insert(at, pf_piece(0, q - 3, part))
    kv_end = len(seq)
    for t in range(4, 32):
        x = [piece("wo", t, j) for j in range(4)]
        if pfs and x[0][5] > pfph:
            seq += pfs
            pfs = None
        seq += x
    ld = Loads()
    state = {"pos": 10, "m0": None}

    def take(n, p, cap, lo=None):
        groups = []
        for k in range(n):
            m0, setup, ins, post, need, earliest = seq[state["pos"]]
            assert earliest <= p, (p, state["pos"], earliest)
            g = list(setup)
            if m0 is not None and m0 != state["m0"]:
                g.append("s_add_u32 m0, %s, %d" % (sr(S_M0KV), m0))
                state["m0"] = m0
                if cap is None:
                    g.append("s_nop 0")
            if lo is not None:
                c = lo[state["pos"] % len(lo)] if isinstance(lo, (list, tuple)) else lo
                g += ["s_cbranch_vccz %s_c%d" % (P, state["pos"]), "s_waitcnt vmcnt(%d)" % c, "%s_c%d:" % (P, state["pos"])]
            if cap is not None:
                c = cap[state["pos"] % len(cap)] if isinstance(cap, (list, tuple)) else cap
                g.append("s_waitcnt vmcnt(%d)" % c)
            g.append(ins)
            g += post
            ld.add(need)
            state["pos"] += 1
            groups.append(g)
        return groups

    def bar(p):
        assert all(x[4] > p for x in seq[state["pos"]:state["pos"] + 40]), p
        e("s_waitcnt vmcnt(%d)" % min(ld.wait_for(p), 63))
        e("s_barrier")

    def qp_ops(st):
        ops = []
        for ks in range(2):
            for s in range(8):
                ops.append((tr_reads(B_TA, s, ks, (st & 3) * 16384),
                            [(B_ACC + 32 * qt + 4 * s, B_X + 64 * qt + 4 * (2 * st + ks),
                              None if (st == 0 and ks == 0) else B_ACC + 32 * qt + 4 * s) for qt in range(nt)]))
        return ops

    def qp_halves(h0, h1, groups, upfront):
        for g in groups[:upfront]:
            e.many(g)
        groups = groups[upfront:]
        ops = [o for h in range(h0, h1) for o in qp_ops(h >> 1)[8 * (h & 1):8 * (h & 1) + 8]]
        fill = {}
        for g, lst in enumerate(groups):
            fill.setdefault((g + 1) * len(ops) // len(groups) - 1, []).extend(lst)
        stream(e, ops, B_F, 8, 7, fill=fill)

    def q_write(groups, lo=0, hi=8):
        ks = [8 * qt + s for s in range(lo, hi) for qt in range(nt)]
        at = {}
        for g, lst in enumerate(groups):
            at.setdefault(g * len(ks) // len(groups), []).extend(lst)
        for i, k in enumerate(ks):
            e.many(at.get(i, []))
            a, d = B_ACC + 4 * k, B_F + 2 * k
            if cfg.get("pkB", False):
                for j in range(2):
                    e("v_pk_mul_f32 %s, %s, %s" % (vr(a + 2 * j, 2), sr(S_SCALE, 2), vr(a + 2 * j, 2)))
            else:
                for j in range(4):
                    e("v_mul_f32 %s, %s, %s" % (vr(a + j), sr(S_SCALE), vr(a + j)))
            e("v_cvt_pk_bf16_f32 %s, %s, %s" % (vr(d), vr(a), vr(a + 1)))
            e("v_cvt_pk_bf16_f32 %s, %s, %s" % (vr(d + 1), vr(a + 2), vr(a + 3)))
            e("ds_write_b64 %s, %s offset:%d" % (vr(B_QA), vr(d, 2), k * 512))
        if hi == 8:
            e("s_waitcnt lgkmcnt(0)")

    QS = cfg.get("qsplit", {4: (0, 2, 6, 8), 3: (0, 0, 3, 8), 2: (0, 0, 0, 8)}[H0])

    def phase_work(p, g):
        h0, h1 = (0, H0) if p == 0 else (min(16, H0 + p - 2), min(16, H0 + p))
        nq = QS[p - 12] - QS[p - 13] if p >= 13 else 0
        if p % 2 == 0 and h1 > h0:
            k = len(g) if not nq else (len(g) * 2 + 2) // 3
            qp_halves(h0, h1, g[:k], cfg.get("upfront0", 3) if p == 0 else min(up, k - 1))
            if nq:
                e("s_nop 3")
                q_write(g[k:], QS[p - 13], QS[p - 12])
        elif nq:
            q_write(g, QS[p - 13], QS[p - 12])
        else:
            for x in g:
                e.many(x)

    ops, pre = [], {}
    for st in range(8):
        ops += qp_ops(st)
        pre[16 * st] = ["s_barrier"]
        if st % 2 == 0:
            jx = st // 2
            big = XREG[jx] >= 65536
            for kk in range(4):
                lst = []
                for u in range(2):
                    t = B_T0 + u
                    lst.append("v_xor_b32 %s, 0x%x, %s" % (vr(t), (4 * kk + 2 * u) << 4, vr(B_T3 if big else B_XA)))
                    for qt in range(nt):
                        lst.append("ds_read_b64 %s, %s offset:%d" % (vr(B_X + 64 * qt + 4 * (4 * jx + kk) + 2 * u, 2), vr(t), (0 if big else XREG[jx]) + qt * 4096))
                pre.setdefault(16 * st + 2 * kk, []).extend(lst)
    NT = cfg.get("ntab", [9, 4, 8, 4, 8, 4, 7, 4, 8, 4, 8, 4, 7, 4, 7, 6])
    assert sum(NT) == 96
    o0 = cfg.get("o0", 2)
    up = cfg.get("upfront", 4)
    if cfg.get("proq", False):
        last = ops[112:]
        ops[112:] = [last[8 * ks + s_] for s_ in range(8) for ks in range(2)]
        fill = {}

        def conv(s_, stg):
            out = []
            for qt in range(nt):
                a, d = B_ACC + 32 * qt + 4 * s_, stg + 2 * qt
                out += ["v_mul_f32 %s, %s, %s" % (vr(a + j), sr(S_SCALE), vr(a + j)) for j in range(4)]
                out += ["v_cvt_pk_bf16_f32 %s, %s, %s" % (vr(a), vr(a), vr(a + 1)), "v_cvt_pk_bf16_f32 %s, %s, %s" % (vr(a + 1), vr(a + 2), vr(a + 3))]
            return out

        nd = 5 if nt == 2 else 4
        lag = 3 if nt == 2 else 6
        for s_ in range(nd):
            c_ = conv(s_, 0)
            h = len(c_) // 2
            fill[112 + 2 * s_ + 1 + lag] = c_[:h]
            fill[112 + 2 * s_ + 2 + lag] = c_[h:]
        stream(e, ops, B_F, 8, 7, pre_read=pre, fill=fill)
        g = take(cfg.get("pre0", 2 + o0), -1, None)
        for s_ in range(8):
            if s_ >= nd:
                e.many(conv(s_, 0))
            for qt in range(nt):
                e("ds_write_b64 %s, %s offset:%d" % (vr(B_QA), vr(B_ACC + 32 * qt + 4 * s_, 2), (8 * qt + s_) * 512))
        for x in g:
            e.many(x)
        e("s_waitcnt lgkmcnt(0)")
    else:
        stream(e, ops, B_F, 8, 7, pre_read=pre)
        e("s_nop 3")
        q_write(take(cfg.get("pre0", 2 + o0), -1, None))
    bar(0)
    CAPS = cfg.get("caps", [6.5] * 3 + [6] * 5 + [5.5] * 6 + [5] * 8)
    acc = [0.0]

    def capof(x):
        if x is None or x == int(x):
            return x
        lo = int(x)
        per = {0.25: [lo, lo, lo, lo + 1], 0.5: [lo, lo + 1], 0.75: [lo, lo + 1, lo + 1, lo + 1]}[x - lo]
        return per

    slow = cfg.get("slowbr")
    if slow:
        e("s_cmp_eq_u32 %s, %d" % (sr(S_BR), slow[0]))
        e("s_cselect_b64 vcc, -1, 0")
    for p in range(0, 44):
        phase_work(p & 15, take((cfg.get("ntab0", NT) if p < 16 else NT)[p & 15] + (2 + o0 - cfg.get("pre0", 2 + o0) if p == 0 else 0), p, capof(CAPS[p // 2]), slow[1] if slow else None))
        bar(p + 1)
    B_Z, B_PA, B_LA, B_OA, B_POLL = B_X, B_X + 1, B_X + 2, B_X + 4, B_X + 6
    B_OWN = B_ACC
    st = {}

    def dbuf(k, f):
        return B_X + 16 + 28 * f + 4 * k

    def poll_ld(k, alt=0):
        if k < 0:
            e("buffer_load_dword %s, %s, %s, 0 offen sc1" % (vr(B_POLL), vr(B_Z), sr(S_DBG, 4)))
        else:
            e("buffer_load_dword %s, %s, %s, %s offen sc1" % (vr(B_POLL + alt), vr(B_Z), sr(S_FL, 4), sr(S_T4 if alt else S_T3)))

    def poll_issue(k, alt=0):
        if nt != 1:
            return
        if k >= 0:
            t = sr(S_T4 if alt else S_T3)
            e("s_sub_u32 %s, %s, %d" % (t, sr(S_HG), 1 + k))
            e("s_and_b32 %s, %s, 7" % (t, t))
            e("s_lshl_b32 %s, %s, 7" % (t, t))
        poll_ld(k, alt)
        st["poll", k] = ld.add(1000)

    def poll_check(k, alt=0, want=None):
        if nt != 1:
            return
        lab = "%s_poll%d_%d" % (P, k + 1, alt)
        if want is None:
            want = 8 if k < 0 else k + 1
        e("s_waitcnt vmcnt(%d)" % ld.younger(st["poll", k]))
        e.label(lab)
        e("v_readfirstlane_b32 %s, %s" % (sr(S_T0), vr(B_POLL + alt)))
        e("s_cmp_ge_u32 %s, %d" % (sr(S_T0), 0 if cfg.get("d_nospin") else want))
        e("s_cbranch_scc1 %s_ok" % lab)
        poll_ld(k, alt)
        e("s_waitcnt vmcnt(0)")
        e("s_sub_u32 %s, %s, 1" % (sr(S_CNT), sr(S_CNT)))
        e("s_cbranch_scc0 %s" % lab)
        e("s_mov_b32 %s, 0" % sr(S_CNT))
        e.label(lab + "_ok")

    def fetch(k):
        e("s_sub_u32 %s, %s, %d" % (sr(S_T2), sr(S_HG), 1 + k))
        e("s_and_b32 %s, %s, 7" % (sr(S_T2), sr(S_T2)))
        e("s_lshl_b32 %s, %s, 14" % (sr(S_T2), sr(S_T2)))
        e("s_add_u32 %s, %s, %s" % (sr(S_T2), sr(S_T2), sr(S_PO)))
        for f in range(2 * nt):
            e("buffer_load_dwordx4 %s, %s, %s, %s offen offset:%d sc1" % (vr(dbuf(k, f), 4), vr(B_PA), sr(S_P, 4), sr(S_T2), f * 1024))
            st["data", k] = ld.add(1000)

    B_SEL = B_X + 8

    def accumulate(j):
        for f in range(2 * nt):
            d = B_ACC + 8 * f + 4 * ((j + 1) & 1)
            if j == -1:
                e(mf(d, B_SEL + 4, dbuf(0, f), None))
            elif j == 6:
                e(mf(d, B_SEL, dbuf(6, f), d))
            else:
                e(mf(d, B_SEL + 2, dbuf(j, f) + 2, None if j == 0 else d))

    def arrived(k):
        e("s_waitcnt vmcnt(%d)" % min(62, ld.younger(st["data", k])))

    N3 = cfg.get("ntab3", [6, 4, 6, 4, 8, 3, 5, 4, 5, 4, 5, 4, 5, 4, 6, 4, 6])
    cap3 = cfg.get("cap3", 6)
    pi, pc = cfg.get("pollsched", (73, 76))
    sent = cfg.get("sent", False)
    sw = cfg.get("sentwant", 4)
    lastc = 94 if sent else cfg.get("lastc", 95)
    for p in range(44, 96):
        if p == 48:
            if cfg.get("poll1", True):
                e("v_lshlrev_b32 %s, 24, v0" % vr(B_Z))
            else:
                e("v_mov_b32 %s, 0" % vr(B_Z))
            e("s_mov_b32 %s, 0x40000" % sr(S_CNT))
            e("v_lshl_add_u32 %s, v0, 4, %s" % (vr(B_PA), sr(S_M0KV)))
            e("s_add_u32 %s, %s, %d" % (sr(S_T0), sr(S_M0X), L_Q))
            e("v_lshl_add_u32 %s, v0, 4, %s" % (vr(B_LA), sr(S_T0)))
            e("s_lshl_b32 %s, %s, 17" % (sr(S_PO), sr(S_HG)))
            e("s_lshl_b32 %s, %s, 16" % (sr(S_T0), sr(S_W)))
            e("s_lshl_b32 %s, %s, 10" % (sr(S_T2), sr(S_BR)))
            e("s_add_u32 %s, %s, %s" % (sr(S_T0), sr(S_T0), sr(S_T2)))
            e("s_lshl_b32 %s, %s, 7" % (sr(S_T2), sr(S_HG)))
            e("s_add_u32 %s, %s, %s" % (sr(S_T0), sr(S_T0), sr(S_T2)))
            if cfg.get("trout", True):
                e("v_lshrrev_b32 v1, 3, v0")
                e("v_and_b32 v2, 7, v0")
                e("v_lshl_add_u32 %s, v1, 11, %s" % (vr(B_OA), sr(S_T0)))
                e("v_lshl_add_u32 %s, v2, 4, %s" % (vr(B_OA), vr(B_OA)))
                e("s_add_u32 %s, %s, %d" % (sr(S_T0), sr(S_M0X), L_Q))
                e("v_xor_b32 v3, v1, v2")
                e("v_lshl_add_u32 %s, v1, 7, %s" % (vr(B_OA + 1), sr(S_T0)))
                e("v_lshl_add_u32 %s, v3, 4, %s" % (vr(B_OA + 1), vr(B_OA + 1)))
                e("v_and_b32 v1, 15, v0")
                e("v_lshl_add_u32 %s, v1, 7, %s" % (vr(B_VWQ), sr(S_T0)))
                e("v_lshrrev_b32 v3, 5, v0")
                e("v_xor_b32 v3, v3, v2")
                e("v_lshl_add_u32 %s, v3, 4, %s" % (vr(B_VWQ), vr(B_VWQ)))
                e("v_bfe_u32 v1, v0, 4, 1")
                e("v_lshl_add_u32 %s, v1, 3, %s" % (vr(B_VWQ), vr(B_VWQ)))
                for c_ in range(1, 4):
                    e("v_xor_b32 %s, %d, %s" % (vr(B_VWQ + c_), c_ << 5, vr(B_VWQ)))
                for i in range(1, 4):
                    e("s_mov_b32 s%d, %d" % (S_X + i, i * 16384))
            else:
                e("v_and_b32 v1, 15, v0")
                e("v_lshl_add_u32 %s, v1, 11, %s" % (vr(B_OA), sr(S_T0)))
                e("v_lshrrev_b32 v1, 5, v0")
                e("v_lshl_add_u32 %s, v1, 4, %s" % (vr(B_OA), vr(B_OA)))
                e("v_bfe_u32 v1, v0, 4, 1")
                e("v_lshl_add_u32 %s, v1, 5, %s" % (vr(B_OA), vr(B_OA)))
                e("v_add_u32 %s, 0x8000, %s" % (vr(B_OA + 1), vr(B_OA)))
            e("v_bfe_u32 v1, v0, 2, 2")
            e("v_lshrrev_b32 v2, 4, v0")
            e("v_and_b32 v3, 1, v0")
            e("v_lshlrev_b32 v3, 4, v3")
            e("v_mov_b32 %s, 0x3f80" % vr(B_T0))
            e("v_lshlrev_b32 v3, v3, %s" % vr(B_T0))
            e("v_cmp_eq_u32 vcc, v1, v2")
            e("v_bfe_u32 v1, v0, 1, 1")
            e("v_mov_b32 %s, 0" % vr(B_SEL))
            e("v_cndmask_b32 v3, 0, v3, vcc")
            e("v_cmp_eq_u32 vcc, 0, v1")
            e("v_mov_b32 %s, 0" % vr(B_SEL + 1))
            e("v_mov_b32 %s, 0" % vr(B_SEL + 6))
            e("v_cndmask_b32 %s, 0, v3, vcc" % vr(B_SEL + 2))
            e("v_mov_b32 %s, 0" % vr(B_SEL + 7))
            e("v_sub_u32 %s, v3, %s" % (vr(B_SEL + 3), vr(B_SEL + 2)))
            e("v_mov_b32 %s, %s" % (vr(B_SEL + 4), vr(B_SEL + 2)))
            e("v_mov_b32 %s, %s" % (vr(B_SEL + 5), vr(B_SEL + 3)))
            for j in range(4):
                e("v_mov_b32 %s, -1" % vr(B_T0 + j))
        avail = 0
        while state["pos"] + avail < len(seq) and seq[state["pos"] + avail][5] <= p:
            avail += 1
        if p <= 60:
            n = min(avail, N3[p - 44])
        else:
            n = min(avail, 10)
        if cfg.get("verbose") and nt == 2:
            print(p, "pos", state["pos"], "avail", avail, "n", n, "needs", [x[4] for x in seq[state["pos"]:state["pos"] + n]], file=sys.stderr)
        g = take(n, p, capof(cfg.get("cap2", 4) if p < 48 else cap3) if state["pos"] < kv_end else None)
        if p < 48:
            phase_work(p - 32, g)
        else:
            for x in g:
                e.many(x)
        if p == 64:
            poll_issue(-1)
        if p == 68:
            poll_check(-1)
        if p == cfg.get("sentphase", 78) and sent:
            e("s_add_u32 %s, %s, 1" % (sr(S_T2), sr(S_HG)))
            e("s_and_b32 %s, %s, 7" % (sr(S_T2), sr(S_T2)))
            e("s_lshl_b32 %s, %s, 14" % (sr(S_T2), sr(S_T2)))
            e("s_add_u32 %s, %s, %s" % (sr(S_T2), sr(S_T2), sr(S_PO)))
            for f in range(2 * nt):
                e("buffer_store_dwordx4 %s, %s, %s, %s offen offset:%d sc1" % (vr(B_T0, 4), vr(B_PA), sr(S_P, 4), sr(S_T2), f * 1024))
                ld.add(67 + 4 * sw)
        for k in range(6):
            if p == min(pc + 4 * k, lastc) + 1:
                fetch(k)
        if p == 95 and sent:
            fetch(6)
        if sent and sw > 1:
            if p == cfg.get("spoll", (85, 88))[0]:
                poll_issue(0, 1)
            if p == cfg.get("spoll", (85, 88))[1]:
                poll_check(0, 1, sw)
        for k in range(6):
            if p == pi + 4 * k:
                poll_issue(k)
            if p == min(pc + 4 * k, lastc):
                poll_check(k)
        if p == 95 and cfg.get("early6") and not sent:
            poll_issue(6)
        bar(p + 1)
    late = [k for k in range(6) if min(pc + 4 * k, lastc) > 95]
    if not sent:
        if late:
            poll_issue(6, 1)
        elif not cfg.get("early6"):
            poll_issue(6)
        for k in range(6):
            if min(pc + 4 * k, lastc) == 95:
                fetch(k)
    arrived(4)
    for j in range(-1, 4):
        accumulate(j)
    if not sent:
        for k in late:
            poll_check(k)
        poll_check(6, 1 if late else 0)
    e("s_barrier")
    if not sent:
        for k in late:
            fetch(k)
        fetch(6)
    for f in range(4 * nt):
        e("ds_read_b128 %s, %s offset:%d" % (vr(B_F + 4 * f, 4), vr(B_LA), f * 1024))
    e("s_waitcnt lgkmcnt(0)")
    for j in range(16 * nt):
        e("v_add_f32 %s, %s, %s" % (vr(B_ACC + j), vr(B_ACC + j), vr(B_F + j)))
    e("s_nop 0")
    arrived(5)
    accumulate(4)
    arrived(6)
    if sent:
        lab = P + "_last"
        e.label(lab)
        r = [dbuf(6, f) + j for f in range(2 * nt) for j in range(4)]
        e("v_max3_u32 v1, %s, %s, %s" % (vr(r[0]), vr(r[1]), vr(r[2])))
        for j in range(3, len(r) - 1, 2):
            e("v_max3_u32 v1, v1, %s, %s" % (vr(r[j]), vr(r[j + 1])))
        e("v_max_u32 v1, v1, %s" % vr(r[-1]))
        e("v_cmp_eq_u32 vcc, -1, v1")
        e("s_cbranch_vccz %s_ok" % lab)
        for f in range(2 * nt):
            e("buffer_load_dwordx4 %s, %s, %s, %s offen offset:%d sc1" % (vr(dbuf(6, f), 4), vr(B_PA), sr(S_P, 4), sr(S_T2), f * 1024))
        e("s_waitcnt vmcnt(0)")
        e("s_sub_u32 %s, %s, 1" % (sr(S_CNT), sr(S_CNT)))
        e("s_cbranch_scc0 %s" % lab)
        e.label(lab + "_ok")
    accumulate(5)
    accumulate(6)
    e("s_nop %d" % (1 if nt == 2 else 4))
    if cfg.get("trout", True):
        for k in range(4 * nt):
            a = B_ACC + 4 * k
            e("v_cvt_pk_bf16_f32 %s, %s, %s" % (vr(a), vr(a), vr(a + 1)))
            e("v_cvt_pk_bf16_f32 %s, %s, %s" % (vr(a + 1), vr(a + 2), vr(a + 3)))
            e("ds_write_b64 %s, %s offset:%d" % (vr(B_VWQ + (k & 3)), vr(a, 2), (k >> 2) * 2048))
            if k & 3 == 3:
                for i in range(2):
                    e("ds_read_b128 %s, %s offset:%d" % (vr(B_X + 16 + 8 * (k >> 2) + 4 * i, 4), vr(B_OA + 1), (2 * (k >> 2) + i) * 1024))
        for i in range(2 * nt):
            e("s_waitcnt lgkmcnt(%d)" % ((7 - i if i < 2 else 3 - i) if nt == 2 else 1 - i))
            e("buffer_store_dwordx4 %s, %s, %s, %s offen %s" % (vr(B_X + 16 + 4 * i, 4), vr(B_OA), sr(S_OUT, 4), sr(S_X + i) if i else "0", cfg.get("outpol", "sc1")))
    else:
        e("s_nop 3")
        for j in range(8 * nt):
            e("v_cvt_pk_bf16_f32 %s, %s, %s" % (vr(B_F + j), vr(B_ACC + 2 * j), vr(B_ACC + 2 * j + 1)))
        e("s_nop 1")
        for f in range(2 * nt):
            e("v_permlane16_swap_b32 %s, %s" % (vr(B_F + 4 * f), vr(B_F + 4 * f + 2)))
            e("v_permlane16_swap_b32 %s, %s" % (vr(B_F + 4 * f + 1), vr(B_F + 4 * f + 3)))
        e("s_nop 1")
        for f in range(2 * nt):
            e("buffer_store_dwordx4 %s, %s, %s, 0 offen offset:%d %s" % (vr(B_F + 4 * f, 4), vr(B_OA + (f >> 1)), sr(S_OUT, 4), (f & 1) * 64, cfg.get("outpol", "sc1")))
    if cfg.get("stamps"):
        e("s_waitcnt vmcnt(0)")
        e("s_barrier")
    e("s_endpgm")


def gen(cfg):
    e = Em()
    DIAG[0] = bool(cfg.get("diag"))
    e.raw(HEADER.rstrip("\n"))
    e.raw("; @launch grid=(256,1,1) block=(512,1,1) lds=%d" % LDS_BYTES)
    e.raw(DOC)
    e.raw('.amdgcn_target "amdgcn-amd-amdhsa--gfx950"')
    e.raw(".text")
    gen_entry(e, cfg)
    gen_pro(e, cfg, 2)
    gen_A(e, cfg, 2)
    gen_pro(e, cfg, 1)
    gen_A(e, cfg, 1)
    gen_B(e, cfg, 2)
    gen_B(e, cfg, 1)
    e.label("L_end")
    e("s_endpgm")
    e.raw('.section .rodata,"a"')
    e.raw(".p2align 6")
    e.raw(""".amdhsa_kernel %s_kernel
  .amdhsa_next_free_vgpr 256
  .amdhsa_next_free_sgpr 102
  .amdhsa_accum_offset 256
  .amdhsa_group_segment_fixed_size 0
  .amdhsa_kernarg_size 104
  .amdhsa_user_sgpr_count 2
  .amdhsa_user_sgpr_kernarg_segment_ptr 1
  .amdhsa_system_sgpr_workgroup_id_x 1
.end_amdhsa_kernel""" % NAME)
    return e.text()


if __name__ == "__main__":
    if len(sys.argv) > 2:
        cfgs = eval(open(sys.argv[2]).read())
        for k, v in cfgs.items():
            open("%s_%s.s" % (sys.argv[1], k), "w").write(gen(v))
        print(" ".join("%s_%s.s" % (sys.argv[1], k) for k in cfgs))
    else:
        open(sys.argv[1], "w").write(gen({}))
```

```python
import sys

NAME = "concat_heads__mha_block_cached__mha_block_cached__near_ridge"
WS_BYTES = 288882688
HEADER = open("header.txt").read()

L_KV = 0
L_W = 65536
L_Q = 131072
LDS_BYTES = 163840
FLAG_OFF = 32 << 20
XREG = [L_Q, 0, 32768, L_Q]

S_X, S_K, S_V, S_WQ, S_WO, S_P, S_FL, S_DBG, S_OUT = 36, 40, 44, 48, 52, 56, 60, 64, 68
S_W, S_T0, S_T1, S_T2, S_T3 = 72, 73, 74, 75, 76
S_KVOFF, S_WOFF, S_M0KV, S_HG, S_CNT, S_ITEM, S_PO, S_CH, S_M0X = 77, 78, 79, 80, 81, 82, 83, 84, 85
S_T4, S_BOUND, S_SIG, S_B, S_BR, S_G = 86, 87, 88, 89, 90, 91
S_SCALE = 92
S_T5, S_ROT = 94, 95
S_ST, S_SI, S_SA, S_WS = 96, 100, 4, 8


DOC = """;
; One workgroup per CU = (branch, batch b, group hg of 4 heads); every product is a transposed bf16 MFMA 16x16x32 whose
; B operand (query rows on the lanes) stays in registers and whose A operand (K, V^T, wq^T, wo^T) comes from LDS.
;   waves 0-3 (A): two 16-row query tiles each (wave 3: one).  Load x / first tiles, then per head S^T = K Q^T, softmax,
;                  Q^T of the next head, and the sum over the 8 head groups of this workgroup's 64 output columns.
; Hand-off between the 8 workgroups of a (branch, b): bf16 partial chunks in d_ws (sc1 stores -> vmcnt(0) -> barrier ->
; progress word; consumer: sc1 poll -> barrier -> sc1 loads).  Progress words are cleared by their owner in this launch
;"""


class Em:
    def __init__(self):
        self.L = []

    def __call__(self, s):
        self.L.append("    " + s)

    def many(self, lst):
        for s in lst:
            if s.endswith(":"):
                self.raw(s)
            else:
                self(s)

    def label(self, s):
        self.L.append(s + ":")

    def raw(self, s):
        self.L.append(s)

    def text(self):
        return "\n".join(self.L) + "\n"


def vr(a, n=1):
    return "v%d" % a if n == 1 else "v[%d:%d]" % (a, a + n - 1)


def sr(a, n=1):
    return "s%d" % a if n == 1 else "s[%d:%d]" % (a, a + n - 1)


def mf(d, a, b, c):
    return "v_mfma_f32_16x16x32_bf16 %s, %s, %s, %s" % (vr(d, 4), vr(a, 4), vr(b, 4), "0" if c is None else vr(c, 4))


def stream(e, ops, frag0, nfrag, la, pre_issued=0, next_ops=None, fill=None, bar_after=None, wevery=2, pre_read=None, mid=None):
    assert la < nfrag
    allops = list(ops) + (list(next_ops[:la]) if next_ops else [])
    n = len(ops)
    pos = {}
    cnt = [0]

    def rd(i):
        out = list(pre_read.get(i, [])) if pre_read else []
        out += ["%s %s, %s offset:%d" % (mn, vr(frag0 + 4 * (i % nfrag) + sub, nr), vr(addr), off)
                for (mn, sub, nr, addr, off) in allops[i][0]]
        cnt[0] += sum(1 for s in out if s.startswith("ds_"))
        pos[i] = cnt[0]
        return out

    issued = 0
    while issued < min(la, len(allops)):
        r = rd(issued)
        if issued >= pre_issued:
            e.many(r)
        issued += 1
    waited = -1
    for i in range(n):
        if i > waited:
            upto = 0 if i == 0 else min(i + wevery - 1, n - 1, issued - 1)
            e("s_waitcnt lgkmcnt(%d)" % min(14, cnt[0] - pos[upto]))
            waited = upto
        ms = [mf(d, frag0 + 4 * (i % nfrag), b, c) for (d, b, c) in ops[i][1]]
        if i & 1:
            ms.reverse()
        rs = []
        if issued < len(allops):
            rs = rd(issued)
            issued += 1
        if mid and i in mid:
            e.many(ms[:1] + rs[:1] + mid[i] + ms[1:] + rs[1:])
        elif len(rs) > 2 and len(ms) == 2:
            k = (len(rs) + 1) // 2
            e.many([ms[0]] + rs[:k] + [ms[1]] + rs[k:])
        else:
            while ms or rs:
                if ms:
                    e(ms.pop(0))
                if rs:
                    e(rs.pop(0))
        if fill and i in fill:
            e.many(fill[i])
        if bar_after and i in bar_after:
            e("s_barrier")


def tr_reads(ta, s, ks, base):
    return [("ds_read_b64_tr_b16", 2 * u, 2, ta + s, base + ks * 8192 + u * 4096) for u in range(2)]


def emit_ta(e, ta, t0, t1, base):
    e("v_lshrrev_b32 %s, 2, v0" % vr(t0))
    e("v_and_b32 %s, 7, %s" % (vr(t1), vr(t0)))
    e("v_lshlrev_b32 %s, 8, %s" % (vr(t0), vr(t0)))
    e("v_lshl_add_u32 %s, %s, 5, %s" % (vr(t0), vr(t1), vr(t0)))
    e("v_and_b32 %s, 3, v0" % vr(t1))
    e("v_lshl_add_u32 %s, %s, 3, %s" % (vr(t0), vr(t1), vr(t0)))
    if base:
        e("v_add_u32 %s, 0x%x, %s" % (vr(t0), base, vr(t0)))
    for s in range(8):
        e("v_xor_b32 %s, 0x%x, %s" % (vr(ta + s), s << 5, vr(t0)))


_uid = [0]


def stamp(e, cfg, cond=None):
    if not cfg.get("stamps") or cfg.get("_nt") != 1:
        return
    if cond is not None:
        _uid[0] += 1
        e("s_cmp_lg_u32 %s, %d" % (sr(S_ITEM), cond))
        e("s_cbranch_scc1 L_ns%d" % _uid[0])
        stamp(e, cfg)
        e.label("L_ns%d" % _uid[0])
        return
    e("s_memtime %s" % sr(S_SA, 2))
    e("s_memrealtime %s" % sr(S_SA + 2, 2))
    e("s_mov_b32 m0, %s" % sr(S_SI))
    e("s_waitcnt lgkmcnt(0)")
    e("v_writelane_b32 v6, %s, m0" % sr(S_SA))
    e("v_writelane_b32 v7, %s, m0" % sr(S_SA + 2))
    e("s_add_u32 %s, %s, 1" % (sr(S_SI), sr(S_SI)))


DIAG = [False]


def emit_srd(e, names):
    t = sr(S_T0)
    sel = {"X": (S_X, 4, 14), "K": (S_K, 6, 16), "V": (S_V, 8, 18), "WQ": (S_WQ, 10, 20), "WO": (S_WO, 12, 22)}

    def fin(srd, lo, size):
        e("s_add_u32 s%d, s%d, %s" % (srd, lo, t))
        e("s_addc_u32 s%d, s%d, 0" % (srd + 1, lo + 1))
        if size is not None:
            e("s_mov_b32 s%d, %d" % (srd + 2, size))
        e("s_mov_b32 s%d, 0x20000" % (srd + 3))

    e("s_cmp_lg_u32 %s, 0" % sr(S_BR))
    for nm in names:
        if nm in sel:
            srd, a, b = sel[nm]
            e("s_cselect_b32 s%d, s%d, s%d" % (srd, b, a))
            e("s_cselect_b32 s%d, s%d, s%d" % (srd + 1, b + 1, a + 1))
    for nm in names:
        if nm == "X":
            e("s_mul_i32 %s, %s, 114688" % (t, sr(S_B)))
            fin(S_X, S_X, 114688)
        elif nm in ("K", "V"):
            e("s_lshl_b32 %s, %s, 3" % (t, sr(S_B)))
            e("s_add_u32 %s, %s, %s" % (t, t, sr(S_HG)))
            e("s_lshl_b32 %s, %s, 19" % (t, t))
            fin(sel[nm][0], sel[nm][0], 524288)
        elif nm == "WQ":
            e("s_lshl_b32 %s, %s, 10" % (t, sr(S_HG)))
            e("s_sub_u32 s%d, 0x400000, %s" % (S_WQ + 2, t))
            fin(S_WQ, S_WQ, None)
        elif nm == "WO":
            e("s_lshl_b32 %s, %s, 19" % (t, sr(S_HG)))
            fin(S_WO, S_WO, 524288)
        elif nm == "P":
            e("s_lshl_b32 %s, %s, 20" % (t, sr(S_G)))
            fin(S_P, 24, 0x100000)
        elif nm == "FL":
            e("s_lshl_b32 %s, %s, 10" % (t, sr(S_G)))
            e("s_add_u32 %s, %s, %d" % (t, t, FLAG_OFF))
            fin(S_FL, 24, 1024)
        elif nm == "DBG":
            e("s_lshl_b32 %s, %s, 2" % (t, sr(S_G)))
            if DIAG[0]:
                e("s_add_u32 %s, %s, 128" % (t, t))
            fin(S_DBG, 34, 4)
        elif nm == "OUT":
            e("s_mul_i32 %s, %s, %d" % (t, sr(S_B), 112 * 2048))
            fin(S_OUT, 32, 112 * 2048)


def emit_voff(e, vk, vv, vwq, vx, vwo, t, kvsh=12):
    r4, c16, ce, co, a, b = [vr(t + i) for i in range(6)]
    e("v_lshrrev_b32 %s, 4, v0" % r4)
    e("v_and_b32 %s, 15, v0" % c16)
    e("v_lshlrev_b32 %s, 1, %s" % (ce, r4))
    e("v_xor_b32 %s, %s, %s" % (ce, ce, c16))
    e("v_xor_b32 %s, 8, %s" % (co, ce))
    if vx is not None:
        e("s_lshl_b32 %s, %s, 15" % (sr(S_T0), sr(S_W)))
        e("v_lshl_add_u32 %s, %s, 10, %s" % (a, r4, sr(S_T0)))
        for j in range(4):
            e("v_add_u32 %s, %d, %s" % (b, 4 * j, r4))
            e("v_xor_b32 %s, %s, %s" % (b, b, c16))
            e("v_lshl_add_u32 %s, %s, 4, %s" % (vr(vx + j), b, a))
            if j:
                e("v_add_u32 %s, %d, %s" % (vr(vx + j), j * 3072, vr(vx + j)))
            e("v_add_u32 %s, 16384, %s" % (vr(vx + 4 + j), vr(vx + j)))
    if vwq is not None:
        e("s_lshl_b32 %s, %s, 17" % (sr(S_T0), sr(S_W)))
        e("v_lshl_add_u32 %s, %s, 13, %s" % (a, r4, sr(S_T0)))
        for j in range(4):
            e("v_lshl_add_u32 %s, %s, 4, %s" % (vr(vwq + j), ce if j % 2 == 0 else co, a))
            if j:
                e("v_add_u32 %s, %d, %s" % (vr(vwq + j), j * (4 * 8192 - 1024), vr(vwq + j)))
    if vk is not None:
        e("s_lshl_b32 %s, %s, %d" % (sr(S_T0), sr(S_W), kvsh))
        e("v_lshl_add_u32 %s, %s, 8, %s" % (a, r4, sr(S_T0)))
        for j in range(4):
            e("v_add_u32 %s, %d, %s" % (b, 4 * j, r4))
            e("v_xor_b32 %s, %s, %s" % (b, b, c16))
            e("v_lshl_add_u32 %s, %s, 4, %s" % (vr(vk + j), b, a))
        e("v_lshl_add_u32 %s, %s, 4, %s" % (vr(vv), ce, a))
        e("v_lshl_add_u32 %s, %s, 4, %s" % (vr(vv + 1), co, a))
    if vwo is not None:
        e("s_lshl_b32 %s, %s, 14" % (sr(S_T0), sr(S_W)))
        e("v_lshl_add_u32 %s, %s, 10, %s" % (a, r4, sr(S_T0)))
        for j, c in enumerate((ce, co)):
            e("v_lshrrev_b32 %s, 3, %s" % (b, c))
            e("v_lshl_add_u32 %s, %s, 16, %s" % (vr(vwo + j), b, a))
            e("v_and_b32 %s, 7, %s" % (b, c))
            e("v_lshl_add_u32 %s, %s, 4, %s" % (vr(vwo + j), b, vr(vwo + j)))
        e("v_add_u32 %s, %d, %s" % (vr(vwo + 1), 3072, vr(vwo + 1)))
        e("v_add_u32 %s, %d, %s" % (vr(vwo + 2), 6144, vr(vwo)))
        e("v_add_u32 %s, %d, %s" % (vr(vwo + 3), 6144, vr(vwo + 1)))


def dma(voff, srd, soff, imm, pol):
    return "buffer_load_dwordx4 %s, %s, %s offen offset:%d %s lds" % (vr(voff), sr(srd, 4), soff, imm, pol)


class Loads:
    def __init__(self):
        self.need = []

    def add(self, need):
        self.need.append(need)
        return len(self.need) - 1

    def younger(self, idx):
        return len(self.need) - 1 - idx

    def wait_for(self, bar):
        last = max([i for i, n in enumerate(self.need) if n <= bar], default=-1)
        return len(self.need) - 1 - last


A_OS0, A_OS1, A_Q, A_S, A_O = 64, 96, 128, 160, 192
A_F = 32
A_KA, A_TA, A_NEGM, A_ONES = 8, 12, 20, 28
A_L, A_QA, A_FA, A_T0 = 2, 4, 5, 1
A_TB, A_PA, A_PP = 20, 2, 3
A_STG = [8, 28]
AP_VX, AP_VWQ, AP_VK, AP_VV, AP_T = 64, 72, 76, 80, 84

B_X, B_ACC, B_F = 128, 64, 32
B_VK, B_VV, B_VWQ, B_VWO, B_TA, B_XA, B_QA = 4, 8, 10, 14, 18, 26, 27
B_T0, B_T1, B_T2, B_T3 = 28, 29, 30, 31


def gen_entry(e, cfg):
    stamps = cfg.get("stamps", False)
    kvpol, wpol, xpol = cfg.get("kvpol", "nt"), cfg.get("wpol", ""), cfg.get("xpol", "")
    K = NAME + "_kernel"
    e.raw(".globl %s" % K)
    e.raw(".p2align 8")
    e.raw(".type %s,@function" % K)
    e.label(K)
    e("s_cmp_ge_u32 s2, 256")
    e("s_cbranch_scc1 L_end")
    if stamps:
        e("s_memrealtime %s" % sr(S_ST, 2))
    if cfg.get("badmap"):
        e("s_lshr_b32 s3, s2, 5")
        e("s_and_b32 s2, s2, 31")
        e("s_lshl_b32 s2, s2, 3")
        e("s_or_b32 s2, s2, s3")
    e("s_load_dwordx16 s[4:19], s[0:1], 0")
    e("s_load_dwordx4 s[20:23], s[0:1], 64")
    e("s_load_dwordx2 s[24:25], s[0:1], 96")
    e("s_load_dwordx4 s[32:35], s[0:1], 80")
    e("v_lshrrev_b32 v1, 6, v0")
    e("v_and_b32 v0, 63, v0")
    e("v_readfirstlane_b32 s29, v1")
    e("s_lshr_b32 %s, s2, 4" % sr(S_B))
    e("s_bfe_u32 %s, s2, 0x10002" % sr(S_BR))
    e("s_cmp_eq_u32 s29, 7")
    e("s_cbranch_scc1 L_codepf")
    e("v_lshrrev_b32 v2, 4, v0")
    e("v_and_b32 v3, 15, v0")
    e("v_xor_b32 v3, v3, v2")
    e("v_lshl_add_u32 v1, v1, 4, v2")
    e("v_lshlrev_b32 v1, 10, v1")
    e("v_lshl_add_u32 v8, v3, 4, v1")
    for j in range(1, 4):
        e("v_xor_b32 v%d, %d, v8" % (8 + j, j << 6))
        e("v_add_u32 v%d, %d, v%d" % (8 + j, j * 3072, 8 + j))
    e("s_lshl_b32 s26, s29, 12")
    e("s_add_u32 m0, s26, %d" % XREG[0])
    e("s_waitcnt lgkmcnt(0)")
    emit_srd(e, ["X"])
    for j in range(4):
        e(dma(8 + j, S_X, "0", j * 1024, xpol))
    e.label("L_ids")
    e("s_and_b32 s26, s2, 3")
    e("s_lshl_b32 s26, s26, 1")
    e("s_bfe_u32 s27, s2, 0x10003")
    e("s_or_b32 %s, s26, s27" % sr(S_HG))
    e("s_lshl_b32 %s, %s, 4" % (sr(S_G), sr(S_BR)))
    e("s_add_u32 %s, %s, %s" % (sr(S_G), sr(S_G), sr(S_B)))
    e("s_and_b32 %s, s29, 3" % sr(S_W))
    e("s_lshl_b32 %s, %s, 12" % (sr(S_M0KV), sr(S_W)))
    e("s_lshl_b32 %s, %s, 13" % (sr(S_M0X), sr(S_W)))
    def hashbits(dst, shifts, mask):
        e("s_lshr_b32 %s, s2, %d" % (dst, shifts[0]))
        for x in shifts[1:]:
            e("s_lshr_b32 s28, s2, %d" % x)
            e("s_xor_b32 %s, %s, s28" % (dst, dst))
        e("s_and_b32 %s, %s, %d" % (dst, dst, mask))

    kx, hx = cfg.get("kvrot", (2, 5)), cfg.get("hrot", (1,))
    if kx is None:
        e("s_mov_b32 s3, 0")
    else:
        hashbits("s3", kx, 7)
        e("s_lshl_b32 s3, s3, 14")
    if hx is None:
        e("s_mov_b32 %s, 0" % sr(S_ROT))
    else:
        hashbits(sr(S_ROT), hx, 3)
        e("s_lshl_b32 s28, %s, 17" % sr(S_ROT))
        e("s_or_b32 s3, s3, s28")
        e("s_lshl_b32 %s, %s, 8" % (sr(S_ROT), sr(S_ROT)))
    e("s_mov_b32 %s, %s" % (sr(S_WOFF), sr(S_ROT)))
    e("s_cmp_eq_u32 s29, 7")
    e("s_cbranch_scc1 L_B1")
    e("s_cmp_ge_u32 s29, 4")
    e("s_cbranch_scc1 L_B2")
    emit_voff(e, None, None, AP_VWQ, None, None, AP_T)
    emit_srd(e, ["WQ"])
    for st in range(2):
        e("s_add_u32 m0, %s, %d" % (sr(S_M0KV), L_W + st * 16384))
        e("s_nop 0")
        for j in range(4):
            e(dma(AP_VWQ + j, S_WQ, sr(S_WOFF), j * 1024, wpol))
        e.many(w_advance(st))
    e("s_cmp_eq_u32 s29, 3")
    e("s_cbranch_scc1 L_P1")
    e("s_branch L_P2")
    e.label("L_codepf")
    e("s_getpc_b64 s[30:31]")
    e.label("L_code_ref")
    e("s_sub_u32 s30, s30, L_code_ref-%s_kernel" % NAME)
    e("s_subb_u32 s31, s31, 0")
    e("s_lshr_b32 s26, s2, 3")
    e("s_mul_i32 s26, s26, 22")
    e("v_and_b32 v1, 31, v0")
    e("v_add_u32 v1, s26, v1")
    e("v_lshlrev_b32 v1, 7, v1")
    e("v_min_u32 v1, L_end-%s_kernel, v1" % NAME)
    e("global_load_dword %s, v1, s[30:31]" % vr(B_X + 64))
    e("s_branch L_ids")


def gen_pro(e, cfg, nt):
    stamps = cfg.get("stamps", False)
    kvpol, wpol, xpol = cfg.get("kvpol", "nt"), cfg.get("wpol", ""), cfg.get("xpol", "")
    e.label("L_P%d" % nt)
    cfg["_nt"] = nt
    emit_voff(e, None, None, None, AP_VX, None, AP_T)
    ld = Loads()
    ld.need = [0] * 8 + [1] * 4

    stage = [0]

    def pdma(x):
        pc = cfg.get("pcap", [None, None, None, 7, 7, 7, 7, 7, 7])
        if isinstance(pc, (list, tuple)):
            pc = pc[stage[0]]
        if pc is not None:
            e("s_waitcnt vmcnt(%d)" % pc)
        e(x)

    def xh(jx, half):
        if half >= nt:
            return
        e("s_add_u32 m0, %s, %d" % (sr(S_M0X), XREG[jx] + half * 4096))
        e("s_mov_b32 %s, %d" % (sr(S_T1), jx * 256))
        for j in range(4):
            pdma(dma(AP_VX + 4 * half + j, S_X, sr(S_T1), j * 1024, xpol))
            ld.add(2 * jx)

    def wt(st, need):
        e("s_add_u32 m0, %s, %d" % (sr(S_M0KV), L_W + (st & 3) * 16384))
        e("s_nop 0")
        for j in range(4):
            pdma(dma(AP_VWQ + j, S_WQ, sr(S_WOFF), j * 1024, wpol))
            ld.add(need)
        e.many(w_advance(st))

    def kv(p):
        e("s_add_u32 m0, %s, %d" % (sr(S_M0KV), p * 16384))
        e("s_nop 0")
        for j in range(4):
            pdma(dma(AP_VV + (j & 1) if p else AP_VK + j, S_V if p else S_K, "s3", j * 1024, kvpol))
            ld.add(8)

    def c(st):
        stage[0] = st + 1
        e("s_waitcnt vmcnt(%d)" % ld.wait_for(st))
        e("s_barrier")
        if stamps == 4:
            stamp(e, cfg)

    xh(1, 0)
    emit_srd(e, ["K", "V", "WO", "P", "FL", "DBG"])
    if stamps:
        e("s_mov_b32 %s, 0" % sr(S_SI))
        e("v_mov_b32 v6, 0")
        e("v_mov_b32 v7, 0")
        stamp(e, cfg)
    c(0)
    xh(1, 1); wt(2, 2)
    c(1)
    wt(3, 3); xh(2, 0)
    emit_voff(e, AP_VK, AP_VV, None, None, None, AP_T, cfg.get("kvsh", 12))
    c(2)
    xh(2, 1); wt(4, 4)
    e("v_and_b32 v1, 15, v0")
    e("v_lshrrev_b32 v2, 4, v0")
    e("v_xor_b32 v2, v2, v1")
    e("v_lshlrev_b32 v2, 4, v2")
    e("v_lshl_add_u32 v1, v1, 8, v2")
    for ks in range(4):
        e("v_xor_b32 %s, 0x%x, v1" % (vr(A_KA + ks), ks << 6))
    c(3)
    wt(5, 5); xh(3, 0)
    emit_ta(e, A_TA, 1, 2, 0)
    c(4)
    xh(3, 1); wt(6, 6)
    e("s_add_u32 %s, %s, %d" % (sr(S_T0), sr(S_M0X), L_Q))
    e("v_lshl_add_u32 %s, v0, 4, %s" % (vr(A_QA), sr(S_T0)))
    for j in range(4):
        e("v_mov_b32 %s, 0x3f803f80" % vr(A_ONES + j))
    e("s_mov_b32 %s, 0x46800000" % sr(S_BOUND))
    e("s_mov_b32 %s, 0" % sr(S_ITEM))
    def clear_flag():
        e("s_lshl_b32 %s, %s, 7" % (sr(S_T0), sr(S_HG)))
        e("v_lshrrev_b32 v1, 5, v0")
        e("v_lshlrev_b32 v1, 24, v1")
        e("v_lshl_add_u32 v1, v0, 2, v1")
        e("v_add_u32 %s, %s, v1" % (vr(A_FA), sr(S_T0)))
        e("v_mov_b32 v1, 0")
        e("buffer_store_dword v1, %s, %s, 0 offen sc1" % (vr(A_FA), sr(S_FL, 4)))
        ld.add(8)

    c(5)
    wt(7, 7); kv(0)
    c(6)
    wt(0, 8)
    c(7)
    kv(1)
    if not cfg.get("d_nolast"):
        e("s_waitcnt vmcnt(4)")
    if nt == 1:
        clear_flag()
    if nt == 1:
        e("v_lshlrev_b32 %s, 24, v0" % vr(A_OS0 + 26))
        e("v_mov_b32 %s, 1" % vr(A_OS0 + 27))
        e("s_and_b32 %s, %s, 7" % (sr(S_T5), sr(S_B)))
        if cfg.get("atom", 1) == 0:
            e("buffer_atomic_add %s, %s, %s, 0 offen sc1" % (vr(A_OS0 + 27), vr(A_OS0 + 26), sr(S_DBG, 4)))
    if cfg.get("aprio", 0):
        e("s_setprio %d" % cfg["aprio"])


def kvoff(gs, cfg):
    sh = cfg.get("kvsh", 12) - 12
    t = gs & 7
    lo = t & ((1 << sh) - 1)
    return (gs >> 3) * 131072 + (lo << 12) + ((t >> sh) << (14 + sh))


def w_advance(t):
    t += 1
    return ["s_xor_b32 %s, %s, %d" % (sr(S_WOFF), sr(S_ROT), (t & 7) * 524288 + (t >> 3 & 3) * 256)]


def a_qk(e, nt, half, first=False, pk=True, scale=True):
    kbase = L_KV + (2 * half) * 16384
    ops = []
    for ks in range(4):
        for sub in range(4):
            c0 = (lambda qt: None) if first else (lambda qt: A_NEGM + 4 * qt)
            ops.append(([("ds_read_b128", 0, 4, A_KA + ks, kbase + sub * 4096)],
                        [(A_S + 16 * qt + 4 * sub, A_Q + 16 * qt + 4 * ks, c0(qt) if ks == 0 else A_S + 16 * qt + 4 * sub)
                         for qt in range(nt)]))
    pre, fill = None, None
    if first:
        pre = {4 * ks: ["ds_read_b128 %s, %s offset:%d" % (vr(A_Q + 16 * qt + 4 * ks, 4), vr(A_QA), (4 * qt + ks) * 1024)
                        for qt in range(nt)] for ks in range(4)}
        fill = {i: ["v_pk_mul_f32 %s, %s, %s op_sel_hi:[0,1]" % (vr(A_O + 32 * qt + 2 * i, 2), vr(A_NEGM + 4 * qt, 2), vr(A_O + 32 * qt + 2 * i, 2))
                    for qt in range(nt)] for i in range(16)}
        if not pk:
            fill = {i: ["v_mul_f32 %s, %s, %s" % (vr(A_O + 32 * qt + 2 * i + j), vr(A_NEGM + 4 * qt), vr(A_O + 32 * qt + 2 * i + j))
                        for qt in range(nt) for j in range(2)] for i in range(16)}
    stream(e, ops, A_F, 8, 7, pre_read=pre, fill=fill if scale else None)


def a_exp(e, nt):
    order = [(qt, j) for blk in range(2) for qt in range(nt) for j in range(8 * blk, 8 * blk + 8)]

    def cvt(q2, j2):
        e("v_cvt_pk_bf16_f32 %s, %s, %s" % (vr(A_S + 16 * q2 + j2 // 2), vr(A_S + 16 * q2 + j2), vr(A_S + 16 * q2 + j2 + 1)))

    for i, (qt, j) in enumerate(order):
        e("v_exp_f32 %s, %s" % (vr(A_S + 16 * qt + j), vr(A_S + 16 * qt + j)))
        if i >= 2 and i % 2 == 0:
            cvt(*order[i - 2])
    e("s_nop 0")
    cvt(*order[-2])
    if nt == 1:
        e("s_nop 0")
    for blk in range(2):
        for qt in range(nt):
            e(mf(A_F + 4 * qt, A_ONES, A_S + 16 * qt + 4 * blk, None if blk == 0 else A_F + 4 * qt))
    e("s_nop 7")


def a_pv(e, nt, half, first=False):
    vbase = L_KV + (2 * half + 1) * 16384
    ops = []
    for ks in range(2):
        for s in range(8):
            ops.append((tr_reads(A_TA, s, ks, vbase),
                        [(A_O + 32 * qt + 4 * s, A_S + 16 * qt + 4 * ks, None if (first and ks == 0) else A_O + 32 * qt + 4 * s)
                         for qt in range(nt)]))
    stream(e, ops, A_F, 8, 7)


def a_rowmax(e, t, u, S, floor):
    e("v_max3_f32 %s, %s, %s, %s" % (vr(t), vr(S), vr(S + 1), vr(S + 2)))
    for j in range(3, 15, 2):
        e("v_max3_f32 %s, %s, %s, %s" % (vr(t), vr(t), vr(S + j), vr(S + j + 1)))
    if floor:
        e("v_max3_f32 %s, %s, %s, 0" % (vr(t), vr(t), vr(S + 15)))
    else:
        e("v_max_f32 %s, %s, %s" % (vr(t), vr(t), vr(S + 15)))
    for sw in ("v_permlane32_swap_b32", "v_permlane16_swap_b32"):
        e("v_mov_b32 %s, %s" % (vr(u), vr(t)))
        e("s_nop 1")
        e("%s %s, %s" % (sw, vr(t), vr(u)))
        e("s_nop 1")
        e("v_max_f32 %s, %s, %s" % (vr(t), vr(t), vr(u)))


def a_step(e, nt, half, cfg):
    P = "L_A%d" % nt
    a_qk(e, nt, half)
    e("s_nop %d" % (1 if nt == 2 else 4))
    e.label("%s_exp%d" % (P, half))
    a_exp(e, nt)
    if nt == 2:
        e("v_max_f32 %s, %s, %s" % (vr(A_T0), vr(A_F), vr(A_F + 4)))
        e("v_cmp_lt_f32 vcc, %s, %s" % (sr(S_BOUND), vr(A_T0)))
    else:
        e("v_cmp_lt_f32 vcc, %s, %s" % (sr(S_BOUND), vr(A_F)))
    e("s_cbranch_vccnz %s_slow%d" % (P, half))
    for qt in range(nt):
        e("v_add_f32 %s, %s, %s" % (vr(A_L + qt), vr(A_L + qt), vr(A_F + 4 * qt)))
    e("s_barrier")
    if cfg.get("stamps") == 5:
        stamp(e, cfg, cfg.get("stitem", 2))
    a_pv(e, nt, half)


def a_slow(e, nt, half):
    P = "L_A%d" % nt
    e.label("%s_slow%d" % (P, half))
    a_qk(e, nt, half)
    e("s_nop 7")
    for qt in range(nt):
        t, u = A_F + 4 * qt, A_F + 4 * qt + 1
        S = A_S + 16 * qt
        a_rowmax(e, t, u, S, True)
        e("v_exp_f32 %s, -%s" % (vr(u), vr(t)))
        for j in range(4):
            e("v_sub_f32 %s, %s, %s" % (vr(A_NEGM + 4 * qt + j), vr(A_NEGM + 4 * qt + j), vr(t)))
        for j in range(16):
            e("v_sub_f32 %s, %s, %s" % (vr(S + j), vr(S + j), vr(t)))
        e("v_mul_f32 %s, %s, %s" % (vr(A_L + qt), vr(u), vr(A_L + qt)))
        for j in range(32):
            e("v_mul_f32 %s, %s, %s" % (vr(A_O + 32 * qt + j), vr(u), vr(A_O + 32 * qt + j)))
    e("s_branch %s_exp%d" % (P, half))


def gen_A(e, cfg, nt):
    P = "L_A%d" % nt
    stpol = cfg.get("stpol", "sc1")
    stamps = cfg.get("stamps", False)
    e.label(P)

    def pack(dst):
        for j in range(16 * nt):
            e("v_cvt_pk_bf16_f32 %s, %s, %s" % (vr(dst + j), vr(A_O + 2 * j), vr(A_O + 2 * j + 1)))

    if cfg.get("peel0", True):
        e("s_barrier")
        stamp(e, cfg)
        a_qk(e, nt, 0, first=True, scale=False)
        e("s_mov_b32 %s, 4" % sr(S_CNT))
        e("s_nop 5")
        e("s_branch %s_go" % P)
    e.label(P + "_item")
    e("s_barrier")
    stamp(e, cfg)
    for qt in range(nt):
        e("v_rcp_f32 %s, %s" % (vr(A_NEGM + 4 * qt), vr(A_L + qt)))
    e("s_cmp_eq_u32 %s, 4" % sr(S_ITEM))
    e("s_cbranch_scc1 %s_tail" % P)
    a_qk(e, nt, 0, first=True, pk=cfg.get("pkA", False))
    e("s_mov_b32 %s, 4" % sr(S_CNT))
    e("s_cmp_eq_u32 %s, 1" % sr(S_ITEM))
    e("s_cbranch_scc1 %s_save0" % P)
    e("s_cmp_eq_u32 %s, 2" % sr(S_ITEM))
    e("s_cbranch_scc1 %s_save1" % P)
    e("s_cmp_eq_u32 %s, 3" % sr(S_ITEM))
    e("s_cbranch_scc1 %s_save2" % P)
    e("s_nop 3")
    e.label(P + "_go")
    chains = []
    for qt in range(nt):
        x = Em()
        t, u = A_NEGM + 4 * qt, A_NEGM + 4 * qt + 2
        a_rowmax(x, t, u, A_S + 16 * qt, False)
        chains.append([l.strip() for l in x.L])
    for k in range(len(chains[0])):
        if chains[0][k].startswith("s_nop"):
            e("s_nop %d" % (2 - nt))
        else:
            e.many([c[k] for c in chains])
    for qt in range(nt):
        t, S = A_NEGM + 4 * qt, A_S + 16 * qt
        if cfg.get("pkS", False):
            for j in range(8):
                e("v_pk_add_f32 %s, %s, %s op_sel_hi:[1,0] neg_lo:[0,1] neg_hi:[0,1]" % (vr(S + 2 * j, 2), vr(S + 2 * j, 2), vr(t, 2)))
        else:
            for j in range(16):
                e("v_sub_f32 %s, %s, %s" % (vr(S + j), vr(S + j), vr(t)))
        for j in (1, 2, 3, 0):
            e("v_sub_f32 %s, 0, %s" % (vr(t + j), vr(t)))
    e("s_waitcnt lgkmcnt(0)")
    a_exp(e, nt)
    for qt in range(nt):
        e("v_mov_b32 %s, %s" % (vr(A_L + qt), vr(A_F + 4 * qt)))
    e("s_waitcnt vmcnt(%d)" % (2 - nt if cfg.get("atom", 1) == 0 else 0))
    e("s_barrier")
    if stamps == 5:
        stamp(e, cfg, cfg.get("stitem", 2))
    a_pv(e, nt, 0, first=True)
    e("s_branch %s_mid" % P)
    e.label(P + "_save0")
    pack(A_OS0)
    e("s_branch %s_go" % P)
    e.label(P + "_save1")
    pack(A_OS1)
    e("s_branch %s_go" % P)
    e.label(P + "_save2")
    pack(A_F)
    for f in range(4 * nt):
        e("ds_write_b128 %s, %s offset:%d" % (vr(A_QA), vr(A_F + 4 * f, 4), f * 1024))
    e("s_branch %s_go" % P)
    e.raw(".p2align 3")
    e.label(P + "_loop")
    e("s_barrier")
    if stamps == 2:
        stamp(e, cfg)
    if stamps == 5:
        stamp(e, cfg, cfg.get("stitem", 2))
    a_step(e, nt, 0, cfg)
    e.label(P + "_mid")
    e("s_barrier")
    if nt == 1 and cfg.get("atom", 1) == 1:
        e("s_sub_u32 %s, %s, 1" % (sr(S_T5), sr(S_T5)))
        e("s_cbranch_scc0 %s_noadd" % P)
        e("buffer_atomic_add %s, %s, %s, 0 offen sc1" % (vr(A_OS0 + 27), vr(A_OS0 + 26), sr(S_DBG, 4)))
        e.label(P + "_noadd")
    if stamps == 5:
        stamp(e, cfg, cfg.get("stitem", 2))
    a_step(e, nt, 1, cfg)
    e("s_sub_u32 %s, %s, 1" % (sr(S_CNT), sr(S_CNT)))
    e("s_cmp_lg_u32 %s, 0" % sr(S_CNT))
    e("s_cbranch_scc1 %s_loop" % P)
    e("s_add_u32 %s, %s, 1" % (sr(S_ITEM), sr(S_ITEM)))
    e("s_branch %s_item" % P)
    a_slow(e, nt, 0)
    a_slow(e, nt, 1)
    e.label(P + "_tail")
    for f in range(4 * nt):
        e("ds_read_b128 %s, %s offset:%d" % (vr(A_Q + 4 * f, 4), vr(A_QA), f * 1024))
    for qt in range(nt):
        for i in range(16):
            if cfg.get("pkT", True):
                e("v_pk_mul_f32 %s, %s, %s op_sel_hi:[0,1]" % (vr(A_O + 32 * qt + 2 * i, 2), vr(A_NEGM + 4 * qt, 2), vr(A_O + 32 * qt + 2 * i, 2)))
            else:
                for j in range(2):
                    e("v_mul_f32 %s, %s, %s" % (vr(A_O + 32 * qt + 2 * i + j), vr(A_NEGM + 4 * qt), vr(A_O + 32 * qt + 2 * i + j)))
    for s in range(8):
        e("v_add_u32 %s, 0x10000, %s" % (vr(A_TB + s), vr(A_TA + s)))
    OH = [A_OS0, A_OS1, A_Q, A_S]
    ops = []
    for t in range(8):
        slot = (4 + t) & 7
        ta = A_TB if slot >= 4 else A_TA
        base = (slot & 3) * 16384
        hf, hh = t >> 2, t & 3
        for kk in range(4):
            for c in range(4):
                d = A_O + 32 * hf + 4 * c
                ops.append((tr_reads(ta, 4 * (kk >> 1) + c, kk & 1, base),
                            [(d + 16 * qt, OH[hh] + 16 * qt + 4 * kk, None if (hh == 0 and kk == 0) else d + 16 * qt) for qt in range(nt)]))
    LA = 7
    e("s_waitcnt lgkmcnt(0)")
    if cfg.get("tailprio", 2):
        e("s_setprio %d" % cfg.get("tailprio", 2))
    for i in range(LA):
        for (mn, sub, nr, addr, off) in ops[i][0]:
            e("%s %s, %s offset:%d" % (mn, vr(A_F + 4 * i + sub, nr), vr(addr), off))
    pack(A_S)
    e("v_lshl_add_u32 %s, v0, 4, %s" % (vr(A_PA), sr(S_M0KV)))
    e("v_mov_b32 %s, 0x80000000" % vr(A_PP))
    e("s_mov_b32 %s, %s" % (sr(S_CH), sr(S_HG)))
    e("s_lshl_b32 %s, %s, 14" % (sr(S_T2), sr(S_HG)))
    e("s_mov_b32 %s, 0" % sr(S_PO))
    e("s_mov_b32 %s, 0" % sr(S_SIG))
    e("s_mov_b32 %s, 4" % sr(S_CNT))
    if stamps == 3:
        stamp(e, cfg)

    def nextchunk():
        return ["s_add_u32 %s, %s, 1" % (sr(S_CH), sr(S_CH)), "s_and_b32 %s, %s, 7" % (sr(S_CH), sr(S_CH)),
                "s_lshl_b32 %s, %s, 17" % (sr(S_PO), sr(S_CH)), "s_add_u32 %s, %s, %s" % (sr(S_PO), sr(S_PO), sr(S_T2))]

    fill, mid = {}, {}
    sig = cfg.get("sigtile", 3)
    for hf, addr, at in ((1, A_PP, 0), (0, A_PA, 64)):
        for k in range(2 * nt):
            stg, src = A_STG[k & 1], A_O + 32 * hf + 8 * k
            c = ["v_cvt_pk_bf16_f32 %s, %s, %s" % (vr(stg + (j ^ (2 * hf))), vr(src + 2 * j), vr(src + 2 * j + 1)) for j in range(4)]
            stx = "buffer_store_dwordx4 %s, %s, %s, %s offen offset:%d %s" % (vr(stg, 4), vr(addr), sr(S_P, 4), sr(S_PO), k * 1024, stpol)
            if cfg.get("epi", 0) == 0:
                p0 = at + 3 + 3 * k
                fill[p0] = c[:2]
                fill[p0 + 1] = c[2:]
                fill[p0 + 2] = [stx]
            elif cfg["epi"] == 1:
                p0 = at + 3 + 4 * k
                for j in range(4):
                    mid[p0 + j] = [c[j]]
                fill[p0 + 3] = [stx]
            elif cfg["epi"] == 2:
                p0 = at + 3 + 3 * k
                for j in range(2):
                    mid[p0 + j] = [c[2 * j]]
                    fill[p0 + j] = [c[2 * j + 1]]
                mid[p0 + 2] = [stx]
        for j, x in enumerate(nextchunk()):
            fill[at + 20 + j] = [x]
        fill[at + 16 * sig - 1] = [] if cfg.get("d_nowait") else ["s_waitcnt vmcnt(0)"]
        if nt == 1:
            fill[at + 16 * sig] = ["v_mov_b32 v1, %s" % sr(S_SIG), "s_add_u32 %s, %s, 1" % (sr(S_SIG), sr(S_SIG)),
                                   "buffer_store_dword v1, %s, %s, 0 offen sc1" % (vr(A_FA), sr(S_FL, 4))]
    fill[26] = ["v_mov_b32 %s, %s" % (vr(A_PP), vr(A_PA))]
    fill[124] = ["s_sub_u32 %s, %s, 1" % (sr(S_CNT), sr(S_CNT))]
    fill[125] = ["s_cmp_lg_u32 %s, 0" % sr(S_CNT)]
    e.raw(".p2align 3")
    e.label(P + "_op")
    stream(e, ops, A_F, 8, LA, pre_issued=LA, next_ops=ops, fill=fill, bar_after=set(range(15, 128, 16)), mid=mid, wevery=cfg.get("opw", 2))
    if stamps == 3:
        stamp(e, cfg)
        e("s_cmp_lg_u32 %s, 0" % sr(S_CNT))
    e("s_cbranch_scc1 %s_op" % P)
    e("s_nop 7")
    for f in range(4 * nt):
        e("ds_write_b128 %s, %s offset:%d" % (vr(A_QA), vr(A_O + 32 + 4 * f, 4), f * 1024))
    e("s_waitcnt lgkmcnt(0)")
    e("s_barrier")
    if stamps:
        stamp(e, cfg)
        e("s_waitcnt vmcnt(0)")
        e("s_barrier")
        stamp(e, cfg)
        e("s_cmp_lg_u32 %s, 3" % sr(S_W))
        e("s_cbranch_scc1 L_end")
        e("s_mov_b32 s%d, s24" % S_WS)
        e("s_mov_b32 s%d, s25" % (S_WS + 1))
        e("s_mov_b32 s%d, %d" % (S_WS + 2, WS_BYTES))
        e("s_mov_b32 s%d, 0x20000" % (S_WS + 3))
        e("s_lshl_b32 %s, s2, 9" % sr(S_T0))
        e("s_add_u32 %s, %s, %d" % (sr(S_T0), sr(S_T0), WS_BYTES - 65536 - 131072))
        e("v_lshl_add_u32 v3, v0, 3, %s" % sr(S_T0))
        e("buffer_store_dwordx2 v[6:7], v3, %s, 0 offen" % sr(S_WS, 4))
        e("s_memrealtime %s" % sr(S_ST + 2, 2))
        e("s_waitcnt lgkmcnt(0)")
        for j in range(4):
            e("v_mov_b32 v%d, s%d" % (8 + j, S_ST + j))
        e("s_lshl_b32 %s, s2, 4" % sr(S_T0))
        e("s_add_u32 %s, %s, %d" % (sr(S_T0), sr(S_T0), WS_BYTES - 65536))
        e("v_mov_b32 v3, %s" % sr(S_T0))
        e("buffer_store_dwordx4 v[8:11], v3, %s, 0 offen" % sr(S_WS, 4))
        if cfg.get("diag"):
            e("s_mov_b32 s12, s34")
            e("s_mov_b32 s13, s35")
            e("s_mov_b32 s14, 64")
            e("s_mov_b32 s15, 0x20000")
            e("v_lshlrev_b32 v12, 24, v0")
            e("v_not_b32 v13, v8")
            e("buffer_atomic_umax v10, v12, s[12:15], 0 offen offset:56 sc1")
            e("buffer_atomic_umax v13, v12, s[12:15], 0 offen offset:60 sc1")
            e("s_cmp_lg_u32 s2, 0")
            e("s_cbranch_scc1 L_end")
            e("s_mov_b32 s14, 56")
            e("v_sub_u32 v14, v7, v8")
            e("v_lshlrev_b32 v12, 2, v0")
            e("buffer_atomic_add v14, v12, s[12:15], 0 offen sc1")
    e("s_endpgm")


def gen_B(e, cfg, nt):
    P = "L_B%d" % nt
    kvpol, wpol, opol = cfg.get("kvpol", "nt"), cfg.get("wpol", ""), cfg.get("opol", "")
    e.label(P)
    if cfg.get("bprio", 0):
        e("s_setprio %d" % cfg["bprio"])
    emit_voff(e, B_VK, B_VV, B_VWQ, None, B_VWO, B_F, cfg.get("kvsh", 12))
    emit_ta(e, B_TA, B_T0, B_T1, L_W)
    e("v_and_b32 v1, 15, v0")
    e("v_lshrrev_b32 v2, 5, v0")
    e("v_bfe_u32 v3, v0, 4, 1")
    e("v_xor_b32 %s, v2, v1" % vr(B_T0))
    e("v_lshlrev_b32 %s, 4, %s" % (vr(B_T0), vr(B_T0)))
    e("v_lshl_add_u32 %s, v1, 8, %s" % (vr(B_T0), vr(B_T0)))
    e("v_lshl_add_u32 %s, v3, 3, %s" % (vr(B_T0), vr(B_T0)))
    e("v_add_u32 %s, %s, %s" % (vr(B_XA), sr(S_M0X), vr(B_T0)))
    e("v_add_u32 %s, 0x%x, %s" % (vr(B_T3), L_Q, vr(B_XA)))
    e("s_add_u32 %s, %s, %d" % (sr(S_T0), sr(S_M0X), L_Q))
    e("v_lshl_add_u32 %s, v2, 8, %s" % (vr(B_QA), sr(S_T0)))
    e("v_lshl_add_u32 %s, v1, 4, %s" % (vr(B_QA), vr(B_QA)))
    e("v_lshl_add_u32 %s, v3, 3, %s" % (vr(B_QA), vr(B_QA)))
    e("s_mov_b32 %s, 0x3e0293ee" % sr(S_SCALE))
    e("s_mov_b32 %s, 0x3e0293ee" % sr(S_SCALE + 1))
    e.many(w_advance(8))
    e("s_and_b32 %s, s3, 0x60000" % sr(S_ITEM))
    e("s_xor_b32 %s, s3, %d" % (sr(S_KVOFF), kvoff(1, cfg)))
    e("s_waitcnt lgkmcnt(0)")
    emit_srd(e, ["K", "V", "WQ", "WO", "P", "FL", "DBG", "OUT"])

    KM = ["s3"] * 4
    for i, sh in enumerate(cfg.get("kvrot2", [])):
        d = "s%d" % (4 + i)
        e("s_lshr_b32 %s, s2, %d" % (d, sh[0]))
        for x in sh[1:]:
            e("s_lshr_b32 s28, s2, %d" % x)
            e("s_xor_b32 %s, %s, s28" % (d, d))
        e("s_and_b32 %s, %s, 7" % (d, d))
        e("s_lshl_b32 %s, %s, 14" % (d, d))
        e("s_or_b32 %s, %s, %s" % (d, d, sr(S_ITEM)))
        KM[1 + i] = d

    H0 = 2

    def wlast(q):
        return wuse(q) if H0 == 4 else 2 * q

    def wuse(q):
        return 2 * q

    def piece(kind, q, j):
        if kind == "kv":
            ins = dma(B_VV + (j & 1), S_V, sr(S_KVOFF), j * 1024, kvpol) if q & 1 else dma(B_VK + j, S_K, sr(S_KVOFF), j * 1024, kvpol)
            post = ["s_xor_b32 %s, %s, %d" % (sr(S_KVOFF), KM[((q + 1) >> 4) & 3], kvoff((q + 1) // 2, cfg))] if (q & 1 and j == 3) else []
            return ((q & 3) * 16384, [], ins, post, q, q - 3)
        if kind == "w":
            return (L_W + (q & 3) * 16384, [], dma(B_VWQ + j, S_WQ, sr(S_WOFF), j * 1024, wpol),
                    w_advance(q + 8) if j == 3 else [], wuse(q), wlast(q - 4) + 1)
        if kind == "wo":
            setup = ["s_add_u32 %s, %s, %d" % (sr(S_T1), sr(S_HG), 1 + (q >> 2)), "s_and_b32 %s, %s, 7" % (sr(S_T1), sr(S_T1)),
                     "s_lshl_b32 %s, %s, 7" % (sr(S_T1), sr(S_T1)), "s_or_b32 %s, %s, %s" % (sr(S_T1), sr(S_T1), sr(S_ITEM)), "s_xor_b32 %s, %s, %d" % (sr(S_T1), sr(S_T1), (q & 3) * 131072)] if j == 0 else []
            return (((4 + q) & 7) * 16384, setup, dma(B_VWO + j, S_WO, sr(S_T1), j * 1024, opol), [], max(64, 63 + q),
                    wlast(20 + q) + 1 if q < 4 else max(57 + q, cfg.get("wostart", 62)))

    seq = []
    for q in range(0, 64):
        seq += [piece("kv", q, j) for j in range(4)]
        if q <= 46:
            seq += [piece("w", (q + 1) // 2, j) for j in ((0, 1) if q & 1 else (2, 3))]
        elif q >= 48:
            seq.append(piece("wo", (q - 48) // 4, (q - 48) % 4))
    kv_end = len(seq)
    pfph = cfg.get("pfphase", 62)
    def pf_piece(x, ph, part=None):
        setup = ["s_xor_b32 %s, %s, %d" % (sr(S_T2), sr(S_B), x), "s_lshl_b32 %s, %s, 15" % (sr(S_T2), sr(S_T2)),
                 "s_add_u32 %s, %s, %s" % (sr(S_T2), sr(S_T2), sr(S_M0X)), "v_lshlrev_b32 v1, 7, v0"]
        if part is not None:
            setup += ["v_lshrrev_b32 v3, 4, v0", "v_xor_b32 v3, %d, v3" % part, "v_lshl_add_u32 v1, v3, 24, v1"]
        return (None, setup, "buffer_load_dword v2, v1, %s, %s offen" % (sr(S_WO, 4), sr(S_T2)), [], 1000, ph)

    pfs = [pf_piece(x, pfph) for x in cfg.get("pfx", [0])]
    for part, q in enumerate(cfg.get("pfq", [])):
        at = max(i for i, x in enumerate(seq) if x[4] == q and x[5] == q - 3) + 1
        seq.insert(at, pf_piece(0, q - 3, part))
    kv_end = len(seq)
    for t in range(4, 32):
        x = [piece("wo", t, j) for j in range(4)]
        if pfs and x[0][5] > pfph:
            seq += pfs
            pfs = None
        seq += x
    ld = Loads()
    state = {"pos": 10, "m0": None}

    def take(n, p, cap, lo=None):
        groups = []
        for k in range(n):
            m0, setup, ins, post, need, earliest = seq[state["pos"]]
            assert earliest <= p, (p, state["pos"], earliest)
            g = list(setup)
            if m0 is not None and m0 != state["m0"]:
                g.append("s_add_u32 m0, %s, %d" % (sr(S_M0KV), m0))
                state["m0"] = m0
                if cap is None:
                    g.append("s_nop 0")
            if lo is not None:
                c = lo[state["pos"] % len(lo)] if isinstance(lo, (list, tuple)) else lo
                g += ["s_cbranch_vccz %s_c%d" % (P, state["pos"]), "s_waitcnt vmcnt(%d)" % c, "%s_c%d:" % (P, state["pos"])]
            if cap is not None:
                c = cap[state["pos"] % len(cap)] if isinstance(cap, (list, tuple)) else cap
                g.append("s_waitcnt vmcnt(%d)" % c)
            g.append(ins)
            g += post
            ld.add(need)
            state["pos"] += 1
            groups.append(g)
        return groups

    def bar(p):
        assert all(x[4] > p for x in seq[state["pos"]:state["pos"] + 40]), p
        e("s_waitcnt vmcnt(%d)" % min(ld.wait_for(p), 63))
        e("s_barrier")

    def qp_ops(st):
        ops = []
        for ks in range(2):
            for s in range(8):
                ops.append((tr_reads(B_TA, s, ks, (st & 3) * 16384),
                            [(B_ACC + 32 * qt + 4 * s, B_X + 64 * qt + 4 * (2 * st + ks),
                              None if (st == 0 and ks == 0) else B_ACC + 32 * qt + 4 * s) for qt in range(nt)]))
        return ops

    def qp_halves(h0, h1, groups, upfront):
        for g in groups[:upfront]:
            e.many(g)
        groups = groups[upfront:]
        ops = [o for h in range(h0, h1) for o in qp_ops(h >> 1)[8 * (h & 1):8 * (h & 1) + 8]]
        fill = {}
        for g, lst in enumerate(groups):
            fill.setdefault((g + 1) * len(ops) // len(groups) - 1, []).extend(lst)
        stream(e, ops, B_F, 8, 7, fill=fill)

    def q_write(groups, lo=0, hi=8, pk=False):
        ks = [8 * qt + s for s in range(lo, hi) for qt in range(nt)]
        at = {}
        for g, lst in enumerate(groups):
            at.setdefault(g * len(ks) // len(groups), []).extend(lst)
        def mul(k):
            a = B_ACC + 4 * k
            if cfg.get("pkB", False) or (pk and cfg.get("pkP", True)):
                return ["v_pk_mul_f32 %s, %s, %s" % (vr(a + 2 * j, 2), sr(S_SCALE, 2), vr(a + 2 * j, 2)) for j in range(2)]
            return ["v_mul_f32 %s, %s, %s" % (vr(a + j), sr(S_SCALE), vr(a + j)) for j in range(4)]

        def cvt(k):
            a, d = B_ACC + 4 * k, B_F + 2 * k
            return ["v_cvt_pk_bf16_f32 %s, %s, %s" % (vr(d + j), vr(a + 2 * j), vr(a + 2 * j + 1)) for j in range(2)]

        def wr(k):
            return ["ds_write_b64 %s, %s offset:%d" % (vr(B_QA), vr(B_F + 2 * k, 2), k * 512)]

        lag = cfg.get("qlag", 0)
        for i in range(len(ks) + 2 * lag):
            e.many(at.get(i, []))
            if i < len(ks):
                e.many(mul(ks[i]))
            if lag <= i < len(ks) + lag:
                e.many(cvt(ks[i - lag]))
            if i >= 2 * lag:
                e.many(wr(ks[i - 2 * lag]))
        if hi == 8:
            e("s_waitcnt lgkmcnt(0)")

    QS = cfg.get("qsplit", {4: (0, 2, 6, 8), 3: (0, 0, 3, 8), 2: (0, 0, 0, 8)}[H0])

    def phase_work(p, g):
        h0, h1 = (0, H0) if p == 0 else (min(16, H0 + p - 2), min(16, H0 + p))
        nq = QS[p - 12] - QS[p - 13] if p >= 13 else 0
        if p % 2 == 0 and h1 > h0:
            k = len(g) if not nq else (len(g) * 2 + 2) // 3
            qp_halves(h0, h1, g[:k], cfg.get("upfront0", 3) if p == 0 else min(up, k - 1))
            if nq:
                e("s_nop 3")
                q_write(g[k:], QS[p - 13], QS[p - 12])
        elif nq:
            q_write(g, QS[p - 13], QS[p - 12])
        else:
            for x in g:
                e.many(x)

    ops, pre = [], {}
    for st in range(8):
        ops += qp_ops(st)
        pre[16 * st] = ["s_waitcnt vmcnt(0)", "s_barrier"] if (st == 0 and nt == 2) else ["s_barrier"]
        if st % 2 == 0:
            jx = st // 2
            big = XREG[jx] >= 65536
            for kk in range(4):
                lst = []
                for u in range(2):
                    t = B_T0 + u
                    lst.append("v_xor_b32 %s, 0x%x, %s" % (vr(t), (4 * kk + 2 * u) << 4, vr(B_T3 if big else B_XA)))
                    for qt in range(nt):
                        lst.append("ds_read_b64 %s, %s offset:%d" % (vr(B_X + 64 * qt + 4 * (4 * jx + kk) + 2 * u, 2), vr(t), (0 if big else XREG[jx]) + qt * 4096))
                pre.setdefault(16 * st + 2 * kk, []).extend(lst)
    NT = cfg.get("ntab", [9, 4, 8, 4, 8, 4, 7, 4, 8, 4, 8, 4, 7, 4, 7, 6])
    assert sum(NT) == 96
    o0 = cfg.get("o0", 2)
    up = cfg.get("upfront", 4)
    if cfg.get("proq", False):
        last = ops[112:]
        ops[112:] = [last[8 * ks + s_] for s_ in range(8) for ks in range(2)]
        fill = {}

        def conv(s_, stg):
            out = []
            for qt in range(nt):
                a, d = B_ACC + 32 * qt + 4 * s_, stg + 2 * qt
                out += ["v_mul_f32 %s, %s, %s" % (vr(a + j), sr(S_SCALE), vr(a + j)) for j in range(4)]
                out += ["v_cvt_pk_bf16_f32 %s, %s, %s" % (vr(a), vr(a), vr(a + 1)), "v_cvt_pk_bf16_f32 %s, %s, %s" % (vr(a + 1), vr(a + 2), vr(a + 3))]
            return out

        nd = 5 if nt == 2 else 4
        lag = 3 if nt == 2 else 6
        for s_ in range(nd):
            c_ = conv(s_, 0)
            h = len(c_) // 2
            fill[112 + 2 * s_ + 1 + lag] = c_[:h]
            fill[112 + 2 * s_ + 2 + lag] = c_[h:]
        stream(e, ops, B_F, 8, 7, pre_read=pre, fill=fill)
        g = take(cfg.get("pre0", 2 + o0), -1, None)
        for s_ in range(8):
            if s_ >= nd:
                e.many(conv(s_, 0))
            for qt in range(nt):
                e("ds_write_b64 %s, %s offset:%d" % (vr(B_QA), vr(B_ACC + 32 * qt + 4 * s_, 2), (8 * qt + s_) * 512))
        for x in g:
            e.many(x)
        e("s_waitcnt lgkmcnt(0)")
    else:
        stream(e, ops, B_F, 8, 7, pre_read=pre)
        e("s_nop 3")
        q_write(take(cfg.get("pre0", 2 + o0), -1, None), pk=True)
    bar(0)
    CAPS = cfg.get("caps", [6.5] * 3 + [6] * 5 + [5.5] * 6 + [5] * 8)
    acc = [0.0]

    def capof(x):
        if x is None or x == int(x):
            return x
        lo = int(x)
        per = {0.25: [lo, lo, lo, lo + 1], 0.5: [lo, lo + 1], 0.75: [lo, lo + 1, lo + 1, lo + 1]}[x - lo]
        return per

    slow = cfg.get("slowbr")
    if slow:
        e("s_cmp_eq_u32 %s, %d" % (sr(S_BR), slow[0]))
        e("s_cselect_b64 vcc, -1, 0")
    for p in range(0, 44):
        phase_work(p & 15, take((cfg.get("ntab0", NT) if p < 16 else NT)[p & 15] + (2 + o0 - cfg.get("pre0", 2 + o0) if p == 0 else 0), p, capof(CAPS[p // 2]), slow[1] if slow else None))
        bar(p + 1)
    B_Z, B_PA, B_LA, B_OA, B_POLL = B_X, B_X + 1, B_X + 2, B_X + 4, B_X + 6
    B_OWN = B_ACC
    st = {}

    def dbuf(k, f):
        return B_X + 16 + 28 * f + 4 * k

    def poll_ld(k, alt=0):
        if k < 0:
            e("buffer_load_dword %s, %s, %s, 0 offen sc1" % (vr(B_POLL), vr(B_Z), sr(S_DBG, 4)))
        else:
            e("buffer_load_dword %s, %s, %s, %s offen sc1" % (vr(B_POLL + alt), vr(B_Z), sr(S_FL, 4), sr(S_T4 if alt else S_T3)))

    def poll_issue(k, alt=0):
        if nt != 1:
            return
        if k >= 0:
            t = sr(S_T4 if alt else S_T3)
            e("s_sub_u32 %s, %s, %d" % (t, sr(S_HG), 1 + k))
            e("s_and_b32 %s, %s, 7" % (t, t))
            e("s_lshl_b32 %s, %s, 7" % (t, t))
        poll_ld(k, alt)
        st["poll", k] = ld.add(1000)

    def poll_check(k, alt=0, want=None):
        if nt != 1:
            return
        lab = "%s_poll%d_%d" % (P, k + 1, alt)
        if want is None:
            want = 8 if k < 0 else k + 1
        e("s_waitcnt vmcnt(%d)" % ld.younger(st["poll", k]))
        e.label(lab)
        e("v_readfirstlane_b32 %s, %s" % (sr(S_T0), vr(B_POLL + alt)))
        e("s_cmp_ge_u32 %s, %d" % (sr(S_T0), 0 if cfg.get("d_nospin") else want))
        e("s_cbranch_scc1 %s_ok" % lab)
        poll_ld(k, alt)
        e("s_waitcnt vmcnt(0)")
        e("s_sub_u32 %s, %s, 1" % (sr(S_CNT), sr(S_CNT)))
        e("s_cbranch_scc0 %s" % lab)
        e("s_mov_b32 %s, 0" % sr(S_CNT))
        e.label(lab + "_ok")

    def fetch(k):
        e("s_sub_u32 %s, %s, %d" % (sr(S_T2), sr(S_HG), 1 + k))
        e("s_and_b32 %s, %s, 7" % (sr(S_T2), sr(S_T2)))
        e("s_lshl_b32 %s, %s, 14" % (sr(S_T2), sr(S_T2)))
        e("s_add_u32 %s, %s, %s" % (sr(S_T2), sr(S_T2), sr(S_PO)))
        for f in range(2 * nt):
            e("buffer_load_dwordx4 %s, %s, %s, %s offen offset:%d sc1" % (vr(dbuf(k, f), 4), vr(B_PA), sr(S_P, 4), sr(S_T2), f * 1024))
            st["data", k] = ld.add(1000)

    B_SEL = B_X + 8

    def accumulate(j):
        for f in range(2 * nt):
            d = B_ACC + 8 * f + 4 * ((j + 1) & 1)
            if j == -1:
                e(mf(d, B_SEL + 4, dbuf(0, f), None))
            elif j == 6:
                e(mf(d, B_SEL, dbuf(6, f), d))
            else:
                e(mf(d, B_SEL + 2, dbuf(j, f) + 2, None if j == 0 else d))

    def arrived(k):
        e("s_waitcnt vmcnt(%d)" % min(62, ld.younger(st["data", k])))

    N3 = cfg.get("ntab3", [6, 4, 6, 4, 8, 3, 5, 4, 5, 4, 5, 4, 5, 4, 6, 4, 6])
    cap3 = cfg.get("cap3", 6)
    pi, pc = cfg.get("pollsched", (73, 76))
    sent = cfg.get("sent", False)
    sw = cfg.get("sentwant", 4)
    lastc = 94 if sent else cfg.get("lastc", 95)
    for p in range(44, 96):
        if p == 48:
            if cfg.get("poll1", True):
                e("v_lshlrev_b32 %s, 24, v0" % vr(B_Z))
            else:
                e("v_mov_b32 %s, 0" % vr(B_Z))
            e("s_mov_b32 %s, 0x40000" % sr(S_CNT))
            e("v_lshl_add_u32 %s, v0, 4, %s" % (vr(B_PA), sr(S_M0KV)))
            e("s_add_u32 %s, %s, %d" % (sr(S_T0), sr(S_M0X), L_Q))
            e("v_lshl_add_u32 %s, v0, 4, %s" % (vr(B_LA), sr(S_T0)))
            e("s_lshl_b32 %s, %s, 17" % (sr(S_PO), sr(S_HG)))
            e("s_lshl_b32 %s, %s, 16" % (sr(S_T0), sr(S_W)))
            e("s_lshl_b32 %s, %s, 10" % (sr(S_T2), sr(S_BR)))
            e("s_add_u32 %s, %s, %s" % (sr(S_T0), sr(S_T0), sr(S_T2)))
            e("s_lshl_b32 %s, %s, 7" % (sr(S_T2), sr(S_HG)))
            e("s_add_u32 %s, %s, %s" % (sr(S_T0), sr(S_T0), sr(S_T2)))
            if cfg.get("trout", True):
                e("v_lshrrev_b32 v1, 3, v0")
                e("v_and_b32 v2, 7, v0")
                e("v_lshl_add_u32 %s, v1, 11, %s" % (vr(B_OA), sr(S_T0)))
                e("v_lshl_add_u32 %s, v2, 4, %s" % (vr(B_OA), vr(B_OA)))
                e("s_add_u32 %s, %s, %d" % (sr(S_T0), sr(S_M0X), L_Q))
                e("v_xor_b32 v3, v1, v2")
                e("v_lshl_add_u32 %s, v1, 7, %s" % (vr(B_OA + 1), sr(S_T0)))
                e("v_lshl_add_u32 %s, v3, 4, %s" % (vr(B_OA + 1), vr(B_OA + 1)))
                e("v_and_b32 v1, 15, v0")
                e("v_lshl_add_u32 %s, v1, 7, %s" % (vr(B_VWQ), sr(S_T0)))
                e("v_lshrrev_b32 v3, 5, v0")
                e("v_xor_b32 v3, v3, v2")
                e("v_lshl_add_u32 %s, v3, 4, %s" % (vr(B_VWQ), vr(B_VWQ)))
                e("v_bfe_u32 v1, v0, 4, 1")
                e("v_lshl_add_u32 %s, v1, 3, %s" % (vr(B_VWQ), vr(B_VWQ)))
                for c_ in range(1, 4):
                    e("v_xor_b32 %s, %d, %s" % (vr(B_VWQ + c_), c_ << 5, vr(B_VWQ)))
                for i in range(1, 4):
                    e("s_mov_b32 s%d, %d" % (S_X + i, i * 16384))
            else:
                e("v_and_b32 v1, 15, v0")
                e("v_lshl_add_u32 %s, v1, 11, %s" % (vr(B_OA), sr(S_T0)))
                e("v_lshrrev_b32 v1, 5, v0")
                e("v_lshl_add_u32 %s, v1, 4, %s" % (vr(B_OA), vr(B_OA)))
                e("v_bfe_u32 v1, v0, 4, 1")
                e("v_lshl_add_u32 %s, v1, 5, %s" % (vr(B_OA), vr(B_OA)))
                e("v_add_u32 %s, 0x8000, %s" % (vr(B_OA + 1), vr(B_OA)))
            e("v_bfe_u32 v1, v0, 2, 2")
            e("v_lshrrev_b32 v2, 4, v0")
            e("v_and_b32 v3, 1, v0")
            e("v_lshlrev_b32 v3, 4, v3")
            e("v_mov_b32 %s, 0x3f80" % vr(B_T0))
            e("v_lshlrev_b32 v3, v3, %s" % vr(B_T0))
            e("v_cmp_eq_u32 vcc, v1, v2")
            e("v_bfe_u32 v1, v0, 1, 1")
            e("v_mov_b32 %s, 0" % vr(B_SEL))
            e("v_cndmask_b32 v3, 0, v3, vcc")
            e("v_cmp_eq_u32 vcc, 0, v1")
            e("v_mov_b32 %s, 0" % vr(B_SEL + 1))
            e("v_mov_b32 %s, 0" % vr(B_SEL + 6))
            e("v_cndmask_b32 %s, 0, v3, vcc" % vr(B_SEL + 2))
            e("v_mov_b32 %s, 0" % vr(B_SEL + 7))
            e("v_sub_u32 %s, v3, %s" % (vr(B_SEL + 3), vr(B_SEL + 2)))
            e("v_mov_b32 %s, %s" % (vr(B_SEL + 4), vr(B_SEL + 2)))
            e("v_mov_b32 %s, %s" % (vr(B_SEL + 5), vr(B_SEL + 3)))
            for j in range(4):
                e("v_mov_b32 %s, -1" % vr(B_T0 + j))
        avail = 0
        while state["pos"] + avail < len(seq) and seq[state["pos"] + avail][5] <= p:
            avail += 1
        if p <= 60:
            n = min(avail, N3[p - 44])
        else:
            n = min(avail, 10)
        if cfg.get("verbose") and nt == 2:
            print(p, "pos", state["pos"], "avail", avail, "n", n, "needs", [x[4] for x in seq[state["pos"]:state["pos"] + n]], file=sys.stderr)
        g = take(n, p, capof(cfg.get("cap2", 4) if p < 48 else cap3) if state["pos"] < kv_end else None)
        if p < 48:
            phase_work(p - 32, g)
        else:
            for x in g:
                e.many(x)
        if p == 64:
            poll_issue(-1)
        if p == 68:
            poll_check(-1)
        if p == cfg.get("sentphase", 78) and sent:
            e("s_add_u32 %s, %s, 1" % (sr(S_T2), sr(S_HG)))
            e("s_and_b32 %s, %s, 7" % (sr(S_T2), sr(S_T2)))
            e("s_lshl_b32 %s, %s, 14" % (sr(S_T2), sr(S_T2)))
            e("s_add_u32 %s, %s, %s" % (sr(S_T2), sr(S_T2), sr(S_PO)))
            for f in range(2 * nt):
                e("buffer_store_dwordx4 %s, %s, %s, %s offen offset:%d sc1" % (vr(B_T0, 4), vr(B_PA), sr(S_P, 4), sr(S_T2), f * 1024))
                ld.add(67 + 4 * sw)
        for k in range(6):
            if p == min(pc + 4 * k, lastc) + 1:
                fetch(k)
        if p == 95 and sent:
            fetch(6)
        if sent and sw > 1:
            if p == cfg.get("spoll", (85, 88))[0]:
                poll_issue(0, 1)
            if p == cfg.get("spoll", (85, 88))[1]:
                poll_check(0, 1, sw)
        for k in range(6):
            if p == pi + 4 * k:
                poll_issue(k)
            if p == min(pc + 4 * k, lastc):
                poll_check(k)
        if p == 95 and cfg.get("early6") and not sent:
            poll_issue(6)
        bar(p + 1)
    late = [k for k in range(6) if min(pc + 4 * k, lastc) > 95]
    if not sent:
        if late:
            poll_issue(6, 1)
        elif not cfg.get("early6"):
            poll_issue(6)
        for k in range(6):
            if min(pc + 4 * k, lastc) == 95:
                fetch(k)
    arrived(4)
    for j in range(-1, 4):
        accumulate(j)
    if not sent:
        for k in late:
            poll_check(k)
        poll_check(6, 1 if late else 0)
    e("s_barrier")
    if not sent:
        for k in late:
            fetch(k)
        fetch(6)
    for f in range(4 * nt):
        e("ds_read_b128 %s, %s offset:%d" % (vr(B_F + 4 * f, 4), vr(B_LA), f * 1024))
    e("s_waitcnt lgkmcnt(0)")
    for j in range(16 * nt):
        e("v_add_f32 %s, %s, %s" % (vr(B_ACC + j), vr(B_ACC + j), vr(B_F + j)))
    e("s_nop 0")
    arrived(5)
    accumulate(4)
    arrived(6)
    if sent:
        lab = P + "_last"
        e.label(lab)
        r = [dbuf(6, f) + j for f in range(2 * nt) for j in range(4)]
        e("v_max3_u32 v1, %s, %s, %s" % (vr(r[0]), vr(r[1]), vr(r[2])))
        for j in range(3, len(r) - 1, 2):
            e("v_max3_u32 v1, v1, %s, %s" % (vr(r[j]), vr(r[j + 1])))
        e("v_max_u32 v1, v1, %s" % vr(r[-1]))
        e("v_cmp_eq_u32 vcc, -1, v1")
        e("s_cbranch_vccz %s_ok" % lab)
        for f in range(2 * nt):
            e("buffer_load_dwordx4 %s, %s, %s, %s offen offset:%d sc1" % (vr(dbuf(6, f), 4), vr(B_PA), sr(S_P, 4), sr(S_T2), f * 1024))
        e("s_waitcnt vmcnt(0)")
        e("s_sub_u32 %s, %s, 1" % (sr(S_CNT), sr(S_CNT)))
        e("s_cbranch_scc0 %s" % lab)
        e.label(lab + "_ok")
    accumulate(5)
    accumulate(6)
    e("s_nop %d" % (1 if nt == 2 else 4))
    if cfg.get("trout", True):
        for k in range(4 * nt):
            a = B_ACC + 4 * k
            e("v_cvt_pk_bf16_f32 %s, %s, %s" % (vr(a), vr(a), vr(a + 1)))
            e("v_cvt_pk_bf16_f32 %s, %s, %s" % (vr(a + 1), vr(a + 2), vr(a + 3)))
            e("ds_write_b64 %s, %s offset:%d" % (vr(B_VWQ + (k & 3)), vr(a, 2), (k >> 2) * 2048))
            if k & 3 == 3:
                for i in range(2):
                    e("ds_read_b128 %s, %s offset:%d" % (vr(B_X + 16 + 8 * (k >> 2) + 4 * i, 4), vr(B_OA + 1), (2 * (k >> 2) + i) * 1024))
        for i in range(2 * nt):
            e("s_waitcnt lgkmcnt(%d)" % ((7 - i if i < 2 else 3 - i) if nt == 2 else 1 - i))
            e("buffer_store_dwordx4 %s, %s, %s, %s offen %s" % (vr(B_X + 16 + 4 * i, 4), vr(B_OA), sr(S_OUT, 4), sr(S_X + i) if i else "0", cfg.get("outpol", "sc1")))
    else:
        e("s_nop 3")
        for j in range(8 * nt):
            e("v_cvt_pk_bf16_f32 %s, %s, %s" % (vr(B_F + j), vr(B_ACC + 2 * j), vr(B_ACC + 2 * j + 1)))
        e("s_nop 1")
        for f in range(2 * nt):
            e("v_permlane16_swap_b32 %s, %s" % (vr(B_F + 4 * f), vr(B_F + 4 * f + 2)))
            e("v_permlane16_swap_b32 %s, %s" % (vr(B_F + 4 * f + 1), vr(B_F + 4 * f + 3)))
        e("s_nop 1")
        for f in range(2 * nt):
            e("buffer_store_dwordx4 %s, %s, %s, 0 offen offset:%d %s" % (vr(B_F + 4 * f, 4), vr(B_OA + (f >> 1)), sr(S_OUT, 4), (f & 1) * 64, cfg.get("outpol", "sc1")))
    if cfg.get("stamps"):
        e("s_waitcnt vmcnt(0)")
        e("s_barrier")
    e("s_endpgm")


def gen(cfg):
    e = Em()
    DIAG[0] = bool(cfg.get("diag"))
    e.raw(HEADER.rstrip("\n"))
    e.raw("; @launch grid=(256,1,1) block=(512,1,1) lds=%d" % LDS_BYTES)
    e.raw(DOC)
    e.raw('.amdgcn_target "amdgcn-amd-amdhsa--gfx950"')
    e.raw(".text")
    gen_entry(e, cfg)
    gen_pro(e, cfg, 2)
    gen_A(e, cfg, 2)
    gen_pro(e, cfg, 1)
    gen_A(e, cfg, 1)
    gen_B(e, cfg, 2)
    gen_B(e, cfg, 1)
    e.label("L_end")
    e("s_endpgm")
    e.raw('.section .rodata,"a"')
    e.raw(".p2align 6")
    e.raw(""".amdhsa_kernel %s_kernel
  .amdhsa_next_free_vgpr 256
  .amdhsa_next_free_sgpr 102
  .amdhsa_accum_offset 256
  .amdhsa_group_segment_fixed_size 0
  .amdhsa_kernarg_size 104
  .amdhsa_user_sgpr_count 2
  .amdhsa_user_sgpr_kernarg_segment_ptr 1
  .amdhsa_system_sgpr_workgroup_id_x 1
.end_amdhsa_kernel""" % NAME)
    return e.text()


if __name__ == "__main__":
    if len(sys.argv) > 2:
        cfgs = eval(open(sys.argv[2]).read())
        for k, v in cfgs.items():
            open("%s_%s.s" % (sys.argv[1], k), "w").write(gen(v))
        print(" ".join("%s_%s.s" % (sys.argv[1], k) for k in cfgs))
    else:
        open(sys.argv[1], "w").write(gen({}))
```

```python
import sys

NAME = "concat_heads__mha_block_cached__mha_block_cached__near_ridge"
WS_BYTES = 288882688
HEADER = open("header.txt").read()

L_KV = 0
L_W = 65536
L_Q = 131072
LDS_BYTES = 163840
FLAG_OFF = 32 << 20
XREG = [L_Q, 0, 32768, L_Q]

S_X, S_K, S_V, S_WQ, S_WO, S_P, S_FL, S_DBG, S_OUT = 36, 40, 44, 48, 52, 56, 60, 64, 68
S_W, S_T0, S_T1, S_T2, S_T3 = 72, 73, 74, 75, 76
S_KVOFF, S_WOFF, S_M0KV, S_HG, S_CNT, S_ITEM, S_PO, S_CH, S_M0X = 77, 78, 79, 80, 81, 82, 83, 84, 85
S_T4, S_BOUND, S_SIG, S_B, S_BR, S_G = 86, 87, 88, 89, 90, 91
S_SCALE = 92
S_T5, S_ROT = 94, 95
S_ST, S_SI, S_SA, S_WS = 96, 100, 4, 8


DOC = """;
; One workgroup per CU = (branch, batch b, group hg of 4 heads); every product is a transposed bf16 MFMA 16x16x32 whose
; B operand (query rows on the lanes) stays in registers and whose A operand (K, V^T, wq^T, wo^T) comes from LDS.
;   waves 0-3 (A): two 16-row query tiles each (wave 3: one).  Load x / first tiles, then per head S^T = K Q^T, softmax,
;                  Q^T of the next head, and the sum over the 8 head groups of this workgroup's 64 output columns.
; Hand-off between the 8 workgroups of a (branch, b): bf16 partial chunks in d_ws (sc1 stores -> vmcnt(0) -> barrier ->
; progress word; consumer: sc1 poll -> barrier -> sc1 loads).  Progress words are cleared by their owner in this launch
;"""


class Em:
    def __init__(self):
        self.L = []

    def __call__(self, s):
        self.L.append("    " + s)

    def many(self, lst):
        for s in lst:
            if s.endswith(":"):
                self.raw(s)
            else:
                self(s)

    def label(self, s):
        self.L.append(s + ":")

    def raw(self, s):
        self.L.append(s)

    def text(self):
        return "\n".join(self.L) + "\n"


def vr(a, n=1):
    return "v%d" % a if n == 1 else "v[%d:%d]" % (a, a + n - 1)


def sr(a, n=1):
    return "s%d" % a if n == 1 else "s[%d:%d]" % (a, a + n - 1)


def mf(d, a, b, c):
    return "v_mfma_f32_16x16x32_bf16 %s, %s, %s, %s" % (vr(d, 4), vr(a, 4), vr(b, 4), "0" if c is None else vr(c, 4))


def stream(e, ops, frag0, nfrag, la, pre_issued=0, next_ops=None, fill=None, bar_after=None, wevery=2, pre_read=None, mid=None):
    assert la < nfrag
    allops = list(ops) + (list(next_ops[:la]) if next_ops else [])
    n = len(ops)
    pos = {}
    cnt = [0]

    def rd(i):
        out = list(pre_read.get(i, [])) if pre_read else []
        out += ["%s %s, %s offset:%d" % (mn, vr(frag0 + 4 * (i % nfrag) + sub, nr), vr(addr), off)
                for (mn, sub, nr, addr, off) in allops[i][0]]
        cnt[0] += sum(1 for s in out if s.startswith("ds_"))
        pos[i] = cnt[0]
        return out

    issued = 0
    while issued < min(la, len(allops)):
        r = rd(issued)
        if issued >= pre_issued:
            e.many(r)
        issued += 1
    waited = -1
    for i in range(n):
        if i > waited:
            upto = 0 if i == 0 else min(i + wevery - 1, n - 1, issued - 1)
            e("s_waitcnt lgkmcnt(%d)" % min(14, cnt[0] - pos[upto]))
            waited = upto
        ms = [mf(d, frag0 + 4 * (i % nfrag), b, c) for (d, b, c) in ops[i][1]]
        if i & 1:
            ms.reverse()
        rs = []
        if issued < len(allops):
            rs = rd(issued)
            issued += 1
        if mid and i in mid:
            e.many(ms[:1] + rs[:1] + mid[i] + ms[1:] + rs[1:])
        elif len(rs) > 2 and len(ms) == 2:
            k = (len(rs) + 1) // 2
            e.many([ms[0]] + rs[:k] + [ms[1]] + rs[k:])
        else:
            while ms or rs:
                if ms:
                    e(ms.pop(0))
                if rs:
                    e(rs.pop(0))
        if fill and i in fill:
            e.many(fill[i])
        if bar_after and i in bar_after:
            e("s_barrier")


def tr_reads(ta, s, ks, base):
    return [("ds_read_b64_tr_b16", 2 * u, 2, ta + s, base + ks * 8192 + u * 4096) for u in range(2)]


def emit_ta(e, ta, t0, t1, base):
    e("v_lshrrev_b32 %s, 2, v0" % vr(t0))
    e("v_and_b32 %s, 7, %s" % (vr(t1), vr(t0)))
    e("v_lshlrev_b32 %s, 8, %s" % (vr(t0), vr(t0)))
    e("v_lshl_add_u32 %s, %s, 5, %s" % (vr(t0), vr(t1), vr(t0)))
    e("v_and_b32 %s, 3, v0" % vr(t1))
    e("v_lshl_add_u32 %s, %s, 3, %s" % (vr(t0), vr(t1), vr(t0)))
    if base:
        e("v_add_u32 %s, 0x%x, %s" % (vr(t0), base, vr(t0)))
    for s in range(8):
        e("v_xor_b32 %s, 0x%x, %s" % (vr(ta + s), s << 5, vr(t0)))


_uid = [0]


def stamp(e, cfg, cond=None):
    if not cfg.get("stamps") or cfg.get("_nt") != 1:
        return
    if cond is not None:
        _uid[0] += 1
        e("s_cmp_lg_u32 %s, %d" % (sr(S_ITEM), cond))
        e("s_cbranch_scc1 L_ns%d" % _uid[0])
        stamp(e, cfg)
        e.label("L_ns%d" % _uid[0])
        return
    e("s_memtime %s" % sr(S_SA, 2))
    e("s_memrealtime %s" % sr(S_SA + 2, 2))
    e("s_mov_b32 m0, %s" % sr(S_SI))
    e("s_waitcnt lgkmcnt(0)")
    e("v_writelane_b32 v6, %s, m0" % sr(S_SA))
    e("v_writelane_b32 v7, %s, m0" % sr(S_SA + 2))
    e("s_add_u32 %s, %s, 1" % (sr(S_SI), sr(S_SI)))


DIAG = [False]


def emit_srd(e, names):
    t = sr(S_T0)
    sel = {"X": (S_X, 4, 14), "K": (S_K, 6, 16), "V": (S_V, 8, 18), "WQ": (S_WQ, 10, 20), "WO": (S_WO, 12, 22)}

    def fin(srd, lo, size):
        e("s_add_u32 s%d, s%d, %s" % (srd, lo, t))
        e("s_addc_u32 s%d, s%d, 0" % (srd + 1, lo + 1))
        if size is not None:
            e("s_mov_b32 s%d, %d" % (srd + 2, size))
        e("s_mov_b32 s%d, 0x20000" % (srd + 3))

    e("s_cmp_lg_u32 %s, 0" % sr(S_BR))
    for nm in names:
        if nm in sel:
            srd, a, b = sel[nm]
            e("s_cselect_b32 s%d, s%d, s%d" % (srd, b, a))
            e("s_cselect_b32 s%d, s%d, s%d" % (srd + 1, b + 1, a + 1))
    for nm in names:
        if nm == "X":
            e("s_mul_i32 %s, %s, 114688" % (t, sr(S_B)))
            fin(S_X, S_X, 114688)
        elif nm in ("K", "V"):
            e("s_lshl_b32 %s, %s, 3" % (t, sr(S_B)))
            e("s_add_u32 %s, %s, %s" % (t, t, sr(S_HG)))
            e("s_lshl_b32 %s, %s, 19" % (t, t))
            fin(sel[nm][0], sel[nm][0], 524288)
        elif nm == "WQ":
            e("s_lshl_b32 %s, %s, 10" % (t, sr(S_HG)))
            e("s_sub_u32 s%d, 0x400000, %s" % (S_WQ + 2, t))
            fin(S_WQ, S_WQ, None)
        elif nm == "WO":
            e("s_lshl_b32 %s, %s, 19" % (t, sr(S_HG)))
            fin(S_WO, S_WO, 524288)
        elif nm == "P":
            e("s_lshl_b32 %s, %s, 20" % (t, sr(S_G)))
            fin(S_P, 24, 0x100000)
        elif nm == "FL":
            e("s_lshl_b32 %s, %s, 10" % (t, sr(S_G)))
            e("s_add_u32 %s, %s, %d" % (t, t, FLAG_OFF))
            fin(S_FL, 24, 1024)
        elif nm == "DBG":
            e("s_lshl_b32 %s, %s, 2" % (t, sr(S_G)))
            if DIAG[0]:
                e("s_add_u32 %s, %s, 128" % (t, t))
            fin(S_DBG, 34, 4)
        elif nm == "OUT":
            e("s_mul_i32 %s, %s, %d" % (t, sr(S_B), 112 * 2048))
            fin(S_OUT, 32, 112 * 2048)


def emit_voff(e, vk, vv, vwq, vx, vwo, t, kvsh=12):
    r4, c16, ce, co, a, b = [vr(t + i) for i in range(6)]
    e("v_lshrrev_b32 %s, 4, v0" % r4)
    e("v_and_b32 %s, 15, v0" % c16)
    e("v_lshlrev_b32 %s, 1, %s" % (ce, r4))
    e("v_xor_b32 %s, %s, %s" % (ce, ce, c16))
    e("v_xor_b32 %s, 8, %s" % (co, ce))
    if vx is not None:
        e("s_lshl_b32 %s, %s, 15" % (sr(S_T0), sr(S_W)))
        e("v_lshl_add_u32 %s, %s, 10, %s" % (a, r4, sr(S_T0)))
        for j in range(4):
            e("v_add_u32 %s, %d, %s" % (b, 4 * j, r4))
            e("v_xor_b32 %s, %s, %s" % (b, b, c16))
            e("v_lshl_add_u32 %s, %s, 4, %s" % (vr(vx + j), b, a))
            if j:
                e("v_add_u32 %s, %d, %s" % (vr(vx + j), j * 3072, vr(vx + j)))
            e("v_add_u32 %s, 16384, %s" % (vr(vx + 4 + j), vr(vx + j)))
    if vwq is not None:
        e("s_lshl_b32 %s, %s, 17" % (sr(S_T0), sr(S_W)))
        e("v_lshl_add_u32 %s, %s, 13, %s" % (a, r4, sr(S_T0)))
        for j in range(4):
            e("v_lshl_add_u32 %s, %s, 4, %s" % (vr(vwq + j), ce if j % 2 == 0 else co, a))
            if j:
                e("v_add_u32 %s, %d, %s" % (vr(vwq + j), j * (4 * 8192 - 1024), vr(vwq + j)))
    if vk is not None:
        e("s_lshl_b32 %s, %s, %d" % (sr(S_T0), sr(S_W), kvsh))
        e("v_lshl_add_u32 %s, %s, 8, %s" % (a, r4, sr(S_T0)))
        for j in range(4):
            e("v_add_u32 %s, %d, %s" % (b, 4 * j, r4))
            e("v_xor_b32 %s, %s, %s" % (b, b, c16))
            e("v_lshl_add_u32 %s, %s, 4, %s" % (vr(vk + j), b, a))
        e("v_lshl_add_u32 %s, %s, 4, %s" % (vr(vv), ce, a))
        e("v_lshl_add_u32 %s, %s, 4, %s" % (vr(vv + 1), co, a))
    if vwo is not None:
        e("s_lshl_b32 %s, %s, 14" % (sr(S_T0), sr(S_W)))
        e("v_lshl_add_u32 %s, %s, 10, %s" % (a, r4, sr(S_T0)))
        for j, c in enumerate((ce, co)):
            e("v_lshrrev_b32 %s, 3, %s" % (b, c))
            e("v_lshl_add_u32 %s, %s, 16, %s" % (vr(vwo + j), b, a))
            e("v_and_b32 %s, 7, %s" % (b, c))
            e("v_lshl_add_u32 %s, %s, 4, %s" % (vr(vwo + j), b, vr(vwo + j)))
        e("v_add_u32 %s, %d, %s" % (vr(vwo + 1), 3072, vr(vwo + 1)))
        e("v_add_u32 %s, %d, %s" % (vr(vwo + 2), 6144, vr(vwo)))
        e("v_add_u32 %s, %d, %s" % (vr(vwo + 3), 6144, vr(vwo + 1)))


def dma(voff, srd, soff, imm, pol):
    return "buffer_load_dwordx4 %s, %s, %s offen offset:%d %s lds" % (vr(voff), sr(srd, 4), soff, imm, pol)


class Loads:
    def __init__(self):
        self.need = []

    def add(self, need):
        self.need.append(need)
        return len(self.need) - 1

    def younger(self, idx):
        return len(self.need) - 1 - idx

    def wait_for(self, bar):
        last = max([i for i, n in enumerate(self.need) if n <= bar], default=-1)
        return len(self.need) - 1 - last


A_OS0, A_OS1, A_Q, A_S, A_O = 64, 96, 128, 160, 192
A_F = 32
A_KA, A_TA, A_NEGM, A_ONES = 8, 12, 20, 28
A_L, A_QA, A_FA, A_T0 = 2, 4, 5, 1
A_TB, A_PA, A_PP = 20, 2, 3
A_STG = [8, 28]
AP_VX, AP_VWQ, AP_VK, AP_VV, AP_T = 64, 72, 76, 80, 84

B_X, B_ACC, B_F = 128, 64, 32
B_VK, B_VV, B_VWQ, B_VWO, B_TA, B_XA, B_QA = 4, 8, 10, 14, 18, 26, 27
B_T0, B_T1, B_T2, B_T3 = 28, 29, 30, 31


def gen_entry(e, cfg):
    stamps = cfg.get("stamps", False)
    kvpol, wpol, xpol = cfg.get("kvpol", "nt"), cfg.get("wpol", ""), cfg.get("xpol", "")
    K = NAME + "_kernel"
    e.raw(".globl %s" % K)
    e.raw(".p2align 8")
    e.raw(".type %s,@function" % K)
    e.label(K)
    e("s_cmp_ge_u32 s2, 256")
    e("s_cbranch_scc1 L_end")
    if stamps:
        e("s_memrealtime %s" % sr(S_ST, 2))
    if cfg.get("badmap"):
        e("s_lshr_b32 s3, s2, 5")
        e("s_and_b32 s2, s2, 31")
        e("s_lshl_b32 s2, s2, 3")
        e("s_or_b32 s2, s2, s3")
    e("s_load_dwordx16 s[4:19], s[0:1], 0")
    e("s_load_dwordx4 s[20:23], s[0:1], 64")
    e("s_load_dwordx2 s[24:25], s[0:1], 96")
    e("s_load_dwordx4 s[32:35], s[0:1], 80")
    e("v_lshrrev_b32 v1, 6, v0")
    e("v_and_b32 v0, 63, v0")
    e("v_readfirstlane_b32 s29, v1")
    e("s_lshr_b32 %s, s2, 4" % sr(S_B))
    e("s_bfe_u32 %s, s2, 0x10002" % sr(S_BR))
    e("s_cmp_eq_u32 s29, 7")
    e("s_cbranch_scc1 L_codepf")
    e("v_lshrrev_b32 v2, 4, v0")
    e("v_and_b32 v3, 15, v0")
    e("v_xor_b32 v3, v3, v2")
    e("v_lshl_add_u32 v1, v1, 4, v2")
    e("v_lshlrev_b32 v1, 10, v1")
    e("v_lshl_add_u32 v8, v3, 4, v1")
    for j in range(1, 4):
        e("v_xor_b32 v%d, %d, v8" % (8 + j, j << 6))
        e("v_add_u32 v%d, %d, v%d" % (8 + j, j * 3072, 8 + j))
    e("s_lshl_b32 s26, s29, 12")
    e("s_add_u32 m0, s26, %d" % XREG[0])
    e("s_waitcnt lgkmcnt(0)")
    emit_srd(e, ["X"])
    for j in range(4):
        e(dma(8 + j, S_X, "0", j * 1024, xpol))
    e.label("L_ids")
    e("s_and_b32 s26, s2, 3")
    e("s_lshl_b32 s26, s26, 1")
    e("s_bfe_u32 s27, s2, 0x10003")
    e("s_or_b32 %s, s26, s27" % sr(S_HG))
    e("s_lshl_b32 %s, %s, 4" % (sr(S_G), sr(S_BR)))
    e("s_add_u32 %s, %s, %s" % (sr(S_G), sr(S_G), sr(S_B)))
    e("s_and_b32 %s, s29, 3" % sr(S_W))
    e("s_lshl_b32 %s, %s, 12" % (sr(S_M0KV), sr(S_W)))
    e("s_lshl_b32 %s, %s, 13" % (sr(S_M0X), sr(S_W)))
    def hashbits(dst, shifts, mask):
        e("s_lshr_b32 %s, s2, %d" % (dst, shifts[0]))
        for x in shifts[1:]:
            e("s_lshr_b32 s28, s2, %d" % x)
            e("s_xor_b32 %s, %s, s28" % (dst, dst))
        e("s_and_b32 %s, %s, %d" % (dst, dst, mask))

    kx, hx = cfg.get("kvrot", (2, 5)), cfg.get("hrot", (1,))
    if kx is None:
        e("s_mov_b32 s3, 0")
    else:
        hashbits("s3", kx, 7)
        e("s_lshl_b32 s3, s3, 14")
    if hx is None:
        e("s_mov_b32 %s, 0" % sr(S_ROT))
    else:
        hashbits(sr(S_ROT), hx, 3)
        e("s_lshl_b32 s28, %s, 17" % sr(S_ROT))
        e("s_or_b32 s3, s3, s28")
        e("s_lshl_b32 %s, %s, 8" % (sr(S_ROT), sr(S_ROT)))
    e("s_mov_b32 %s, %s" % (sr(S_WOFF), sr(S_ROT)))
    e("s_cmp_eq_u32 s29, 7")
    e("s_cbranch_scc1 L_B1")
    e("s_cmp_ge_u32 s29, 4")
    e("s_cbranch_scc1 L_B2")
    emit_voff(e, None, None, AP_VWQ, None, None, AP_T)
    emit_srd(e, ["WQ"])
    for st in range(2):
        e("s_add_u32 m0, %s, %d" % (sr(S_M0KV), L_W + st * 16384))
        e("s_nop 0")
        for j in range(4):
            e(dma(AP_VWQ + j, S_WQ, sr(S_WOFF), j * 1024, wpol))
        e.many(w_advance(st))
    e("s_cmp_eq_u32 s29, 3")
    e("s_cbranch_scc1 L_P1")
    e("s_branch L_P2")
    e.label("L_codepf")
    e("s_getpc_b64 s[30:31]")
    e.label("L_code_ref")
    e("s_sub_u32 s30, s30, L_code_ref-%s_kernel" % NAME)
    e("s_subb_u32 s31, s31, 0")
    e("s_lshr_b32 s26, s2, 3")
    e("s_mul_i32 s26, s26, 22")
    e("v_and_b32 v1, 31, v0")
    e("v_add_u32 v1, s26, v1")
    e("v_lshlrev_b32 v1, 7, v1")
    e("v_min_u32 v1, L_end-%s_kernel, v1" % NAME)
    e("global_load_dword %s, v1, s[30:31]" % vr(B_X + 64))
    e("s_waitcnt lgkmcnt(0)")
    emit_srd(e, ["X"])
    e("s_branch L_ids")


def gen_pro(e, cfg, nt):
    stamps = cfg.get("stamps", False)
    kvpol, wpol, xpol = cfg.get("kvpol", "nt"), cfg.get("wpol", ""), cfg.get("xpol", "")
    e.label("L_P%d" % nt)
    cfg["_nt"] = nt
    emit_voff(e, None, None, None, AP_VX, None, AP_T)
    ld = Loads()
    ld.need = [0] * 8 + [1] * 4

    stage = [0]

    def pdma(x):
        pc = cfg.get("pcap", [None, None, None, 7, 7, 7, 7, 7, 7])
        if isinstance(pc, (list, tuple)):
            pc = pc[stage[0]]
        if pc is not None:
            e("s_waitcnt vmcnt(%d)" % pc)
        e(x)

    def xh(jx, half):
        if half >= nt:
            return
        e("s_add_u32 m0, %s, %d" % (sr(S_M0X), XREG[jx] + half * 4096))
        e("s_mov_b32 %s, %d" % (sr(S_T1), jx * 256))
        for j in range(4):
            pdma(dma(AP_VX + 4 * half + j, S_X, sr(S_T1), j * 1024, xpol))
            ld.add(2 * jx)

    def wt(st, need):
        e("s_add_u32 m0, %s, %d" % (sr(S_M0KV), L_W + (st & 3) * 16384))
        e("s_nop 0")
        for j in range(4):
            pdma(dma(AP_VWQ + j, S_WQ, sr(S_WOFF), j * 1024, wpol))
            ld.add(need)
        e.many(w_advance(st))

    def kv(p):
        e("s_add_u32 m0, %s, %d" % (sr(S_M0KV), p * 16384))
        e("s_nop 0")
        for j in range(4):
            pdma(dma(AP_VV + (j & 1) if p else AP_VK + j, S_V if p else S_K, "s3", j * 1024, kvpol))
            ld.add(8)

    def c(st):
        stage[0] = st + 1
        e("s_waitcnt vmcnt(%d)" % ld.wait_for(st))
        e("s_barrier")
        if stamps == 4:
            stamp(e, cfg)

    xh(1, 0)
    emit_srd(e, ["K", "V", "WO", "P", "FL", "DBG"])
    if stamps:
        e("s_mov_b32 %s, 0" % sr(S_SI))
        e("v_mov_b32 v6, 0")
        e("v_mov_b32 v7, 0")
        stamp(e, cfg)
    c(0)
    xh(1, 1); wt(2, 2)
    c(1)
    wt(3, 3); xh(2, 0)
    emit_voff(e, AP_VK, AP_VV, None, None, None, AP_T, cfg.get("kvsh", 12))
    c(2)
    xh(2, 1); wt(4, 4)
    e("v_and_b32 v1, 15, v0")
    e("v_lshrrev_b32 v2, 4, v0")
    e("v_xor_b32 v2, v2, v1")
    e("v_lshlrev_b32 v2, 4, v2")
    e("v_lshl_add_u32 v1, v1, 8, v2")
    for ks in range(4):
        e("v_xor_b32 %s, 0x%x, v1" % (vr(A_KA + ks), ks << 6))
    c(3)
    wt(5, 5); xh(3, 0)
    emit_ta(e, A_TA, 1, 2, 0)
    c(4)
    xh(3, 1); wt(6, 6)
    e("s_add_u32 %s, %s, %d" % (sr(S_T0), sr(S_M0X), L_Q))
    e("v_lshl_add_u32 %s, v0, 4, %s" % (vr(A_QA), sr(S_T0)))
    for j in range(4):
        e("v_mov_b32 %s, 0x3f803f80" % vr(A_ONES + j))
    e("s_mov_b32 %s, 0x46800000" % sr(S_BOUND))
    e("s_mov_b32 %s, 0" % sr(S_ITEM))
    def clear_flag():
        e("s_lshl_b32 %s, %s, 7" % (sr(S_T0), sr(S_HG)))
        e("v_lshrrev_b32 v1, 5, v0")
        e("v_lshlrev_b32 v1, 24, v1")
        e("v_lshl_add_u32 v1, v0, 2, v1")
        e("v_add_u32 %s, %s, v1" % (vr(A_FA), sr(S_T0)))
        e("v_mov_b32 v1, 0")
        e("buffer_store_dword v1, %s, %s, 0 offen sc1" % (vr(A_FA), sr(S_FL, 4)))
        ld.add(8)

    c(5)
    wt(7, 7); kv(0)
    c(6)
    wt(0, 8)
    c(7)
    kv(1)
    if not cfg.get("d_nolast"):
        e("s_waitcnt vmcnt(4)")
    if nt == 1:
        clear_flag()
    if nt == 1:
        e("v_lshlrev_b32 %s, 24, v0" % vr(A_OS0 + 26))
        e("v_mov_b32 %s, 1" % vr(A_OS0 + 27))
        e("s_and_b32 %s, %s, 7" % (sr(S_T5), sr(S_B)))
        if cfg.get("atom", 1) == 0:
            e("buffer_atomic_add %s, %s, %s, 0 offen sc1" % (vr(A_OS0 + 27), vr(A_OS0 + 26), sr(S_DBG, 4)))
    if cfg.get("aprio", 0):
        e("s_setprio %d" % cfg["aprio"])


def kvoff(gs, cfg):
    sh = cfg.get("kvsh", 12) - 12
    t = gs & 7
    lo = t & ((1 << sh) - 1)
    return (gs >> 3) * 131072 + (lo << 12) + ((t >> sh) << (14 + sh))


def w_advance(t):
    t += 1
    return ["s_xor_b32 %s, %s, %d" % (sr(S_WOFF), sr(S_ROT), (t & 7) * 524288 + (t >> 3 & 3) * 256)]


def a_qk(e, nt, half, first=False, pk=True, scale=True):
    kbase = L_KV + (2 * half) * 16384
    ops = []
    for ks in range(4):
        for sub in range(4):
            c0 = (lambda qt: None) if first else (lambda qt: A_NEGM + 4 * qt)
            ops.append(([("ds_read_b128", 0, 4, A_KA + ks, kbase + sub * 4096)],
                        [(A_S + 16 * qt + 4 * sub, A_Q + 16 * qt + 4 * ks, c0(qt) if ks == 0 else A_S + 16 * qt + 4 * sub)
                         for qt in range(nt)]))
    pre, fill = None, None
    if first:
        pre = {4 * ks: ["ds_read_b128 %s, %s offset:%d" % (vr(A_Q + 16 * qt + 4 * ks, 4), vr(A_QA), (4 * qt + ks) * 1024)
                        for qt in range(nt)] for ks in range(4)}
        fill = {i: ["v_pk_mul_f32 %s, %s, %s op_sel_hi:[0,1]" % (vr(A_O + 32 * qt + 2 * i, 2), vr(A_NEGM + 4 * qt, 2), vr(A_O + 32 * qt + 2 * i, 2))
                    for qt in range(nt)] for i in range(16)}
        if not pk:
            fill = {i: ["v_mul_f32 %s, %s, %s" % (vr(A_O + 32 * qt + 2 * i + j), vr(A_NEGM + 4 * qt), vr(A_O + 32 * qt + 2 * i + j))
                        for qt in range(nt) for j in range(2)] for i in range(16)}
    stream(e, ops, A_F, 8, 7, pre_read=pre, fill=fill if scale else None)


def a_exp(e, nt):
    order = [(qt, j) for blk in range(2) for qt in range(nt) for j in range(8 * blk, 8 * blk + 8)]

    def cvt(q2, j2):
        e("v_cvt_pk_bf16_f32 %s, %s, %s" % (vr(A_S + 16 * q2 + j2 // 2), vr(A_S + 16 * q2 + j2), vr(A_S + 16 * q2 + j2 + 1)))

    for i, (qt, j) in enumerate(order):
        e("v_exp_f32 %s, %s" % (vr(A_S + 16 * qt + j), vr(A_S + 16 * qt + j)))
        if i >= 2 and i % 2 == 0:
            cvt(*order[i - 2])
    e("s_nop 0")
    cvt(*order[-2])
    if nt == 1:
        e("s_nop 0")
    for blk in range(2):
        for qt in range(nt):
            e(mf(A_F + 4 * qt, A_ONES, A_S + 16 * qt + 4 * blk, None if blk == 0 else A_F + 4 * qt))
    e("s_nop 7")


def a_pv(e, nt, half, first=False):
    vbase = L_KV + (2 * half + 1) * 16384
    ops = []
    for ks in range(2):
        for s in range(8):
            ops.append((tr_reads(A_TA, s, ks, vbase),
                        [(A_O + 32 * qt + 4 * s, A_S + 16 * qt + 4 * ks, None if (first and ks == 0) else A_O + 32 * qt + 4 * s)
                         for qt in range(nt)]))
    stream(e, ops, A_F, 8, 7)


def a_rowmax(e, t, u, S, floor):
    e("v_max3_f32 %s, %s, %s, %s" % (vr(t), vr(S), vr(S + 1), vr(S + 2)))
    for j in range(3, 15, 2):
        e("v_max3_f32 %s, %s, %s, %s" % (vr(t), vr(t), vr(S + j), vr(S + j + 1)))
    if floor:
        e("v_max3_f32 %s, %s, %s, 0" % (vr(t), vr(t), vr(S + 15)))
    else:
        e("v_max_f32 %s, %s, %s" % (vr(t), vr(t), vr(S + 15)))
    for sw in ("v_permlane32_swap_b32", "v_permlane16_swap_b32"):
        e("v_mov_b32 %s, %s" % (vr(u), vr(t)))
        e("s_nop 1")
        e("%s %s, %s" % (sw, vr(t), vr(u)))
        e("s_nop 1")
        e("v_max_f32 %s, %s, %s" % (vr(t), vr(t), vr(u)))


def a_step(e, nt, half, cfg):
    P = "L_A%d" % nt
    a_qk(e, nt, half)
    e("s_nop %d" % (1 if nt == 2 else 4))
    e.label("%s_exp%d" % (P, half))
    a_exp(e, nt)
    if nt == 2:
        e("v_max_f32 %s, %s, %s" % (vr(A_T0), vr(A_F), vr(A_F + 4)))
        e("v_cmp_lt_f32 vcc, %s, %s" % (sr(S_BOUND), vr(A_T0)))
    else:
        e("v_cmp_lt_f32 vcc, %s, %s" % (sr(S_BOUND), vr(A_F)))
    e("s_cbranch_vccnz %s_slow%d" % (P, half))
    for qt in range(nt):
        e("v_add_f32 %s, %s, %s" % (vr(A_L + qt), vr(A_L + qt), vr(A_F + 4 * qt)))
    e("s_barrier")
    if cfg.get("stamps") == 5:
        stamp(e, cfg, cfg.get("stitem", 2))
    a_pv(e, nt, half)


def a_slow(e, nt, half):
    P = "L_A%d" % nt
    e.label("%s_slow%d" % (P, half))
    a_qk(e, nt, half)
    e("s_nop 7")
    for qt in range(nt):
        t, u = A_F + 4 * qt, A_F + 4 * qt + 1
        S = A_S + 16 * qt
        a_rowmax(e, t, u, S, True)
        e("v_exp_f32 %s, -%s" % (vr(u), vr(t)))
        for j in range(4):
            e("v_sub_f32 %s, %s, %s" % (vr(A_NEGM + 4 * qt + j), vr(A_NEGM + 4 * qt + j), vr(t)))
        for j in range(16):
            e("v_sub_f32 %s, %s, %s" % (vr(S + j), vr(S + j), vr(t)))
        e("v_mul_f32 %s, %s, %s" % (vr(A_L + qt), vr(u), vr(A_L + qt)))
        for j in range(32):
            e("v_mul_f32 %s, %s, %s" % (vr(A_O + 32 * qt + j), vr(u), vr(A_O + 32 * qt + j)))
    e("s_branch %s_exp%d" % (P, half))


def gen_A(e, cfg, nt):
    P = "L_A%d" % nt
    stpol = cfg.get("stpol", "sc1")
    stamps = cfg.get("stamps", False)
    e.label(P)

    def pack(dst):
        for j in range(16 * nt):
            e("v_cvt_pk_bf16_f32 %s, %s, %s" % (vr(dst + j), vr(A_O + 2 * j), vr(A_O + 2 * j + 1)))

    if cfg.get("peel0", True):
        e("s_barrier")
        stamp(e, cfg)
        a_qk(e, nt, 0, first=True, scale=False)
        e("s_mov_b32 %s, 4" % sr(S_CNT))
        e("s_nop 5")
        e("s_branch %s_go" % P)
    e.label(P + "_item")
    e("s_barrier")
    stamp(e, cfg)
    for qt in range(nt):
        e("v_rcp_f32 %s, %s" % (vr(A_NEGM + 4 * qt), vr(A_L + qt)))
    e("s_cmp_eq_u32 %s, 4" % sr(S_ITEM))
    e("s_cbranch_scc1 %s_tail" % P)
    a_qk(e, nt, 0, first=True, pk=cfg.get("pkA", False))
    e("s_mov_b32 %s, 4" % sr(S_CNT))
    e("s_cmp_eq_u32 %s, 1" % sr(S_ITEM))
    e("s_cbranch_scc1 %s_save0" % P)
    e("s_cmp_eq_u32 %s, 2" % sr(S_ITEM))
    e("s_cbranch_scc1 %s_save1" % P)
    e("s_cmp_eq_u32 %s, 3" % sr(S_ITEM))
    e("s_cbranch_scc1 %s_save2" % P)
    e("s_nop 3")
    e.label(P + "_go")
    chains = []
    for qt in range(nt):
        x = Em()
        t, u = A_NEGM + 4 * qt, A_NEGM + 4 * qt + 2
        a_rowmax(x, t, u, A_S + 16 * qt, False)
        chains.append([l.strip() for l in x.L])
    for k in range(len(chains[0])):
        if chains[0][k].startswith("s_nop"):
            e("s_nop %d" % (2 - nt))
        else:
            e.many([c[k] for c in chains])
    for qt in range(nt):
        t, S = A_NEGM + 4 * qt, A_S + 16 * qt
        if cfg.get("pkS", False):
            for j in range(8):
                e("v_pk_add_f32 %s, %s, %s op_sel_hi:[1,0] neg_lo:[0,1] neg_hi:[0,1]" % (vr(S + 2 * j, 2), vr(S + 2 * j, 2), vr(t, 2)))
        else:
            for j in range(16):
                e("v_sub_f32 %s, %s, %s" % (vr(S + j), vr(S + j), vr(t)))
        for j in (1, 2, 3, 0):
            e("v_sub_f32 %s, 0, %s" % (vr(t + j), vr(t)))
    e("s_waitcnt lgkmcnt(0)")
    a_exp(e, nt)
    for qt in range(nt):
        e("v_mov_b32 %s, %s" % (vr(A_L + qt), vr(A_F + 4 * qt)))
    e("s_waitcnt vmcnt(%d)" % (2 - nt if cfg.get("atom", 1) == 0 else 0))
    e("s_barrier")
    if stamps == 5:
        stamp(e, cfg, cfg.get("stitem", 2))
    a_pv(e, nt, 0, first=True)
    e("s_branch %s_mid" % P)
    e.label(P + "_save0")
    pack(A_OS0)
    e("s_branch %s_go" % P)
    e.label(P + "_save1")
    pack(A_OS1)
    e("s_branch %s_go" % P)
    e.label(P + "_save2")
    pack(A_F)
    for f in range(4 * nt):
        e("ds_write_b128 %s, %s offset:%d" % (vr(A_QA), vr(A_F + 4 * f, 4), f * 1024))
    e("s_branch %s_go" % P)
    e.raw(".p2align 3")
    e.label(P + "_loop")
    e("s_barrier")
    if stamps == 2:
        stamp(e, cfg)
    if stamps == 5:
        stamp(e, cfg, cfg.get("stitem", 2))
    a_step(e, nt, 0, cfg)
    e.label(P + "_mid")
    e("s_barrier")
    if nt == 1 and cfg.get("atom", 1) == 1:
        e("s_sub_u32 %s, %s, 1" % (sr(S_T5), sr(S_T5)))
        e("s_cbranch_scc0 %s_noadd" % P)
        e("buffer_atomic_add %s, %s, %s, 0 offen sc1" % (vr(A_OS0 + 27), vr(A_OS0 + 26), sr(S_DBG, 4)))
        e.label(P + "_noadd")
    if stamps == 5:
        stamp(e, cfg, cfg.get("stitem", 2))
    a_step(e, nt, 1, cfg)
    e("s_sub_u32 %s, %s, 1" % (sr(S_CNT), sr(S_CNT)))
    e("s_cmp_lg_u32 %s, 0" % sr(S_CNT))
    e("s_cbranch_scc1 %s_loop" % P)
    e("s_add_u32 %s, %s, 1" % (sr(S_ITEM), sr(S_ITEM)))
    e("s_branch %s_item" % P)
    a_slow(e, nt, 0)
    a_slow(e, nt, 1)
    e.label(P + "_tail")
    for f in range(4 * nt):
        e("ds_read_b128 %s, %s offset:%d" % (vr(A_Q + 4 * f, 4), vr(A_QA), f * 1024))
    for qt in range(nt):
        for i in range(16):
            if cfg.get("pkT", True):
                e("v_pk_mul_f32 %s, %s, %s op_sel_hi:[0,1]" % (vr(A_O + 32 * qt + 2 * i, 2), vr(A_NEGM + 4 * qt, 2), vr(A_O + 32 * qt + 2 * i, 2)))
            else:
                for j in range(2):
                    e("v_mul_f32 %s, %s, %s" % (vr(A_O + 32 * qt + 2 * i + j), vr(A_NEGM + 4 * qt), vr(A_O + 32 * qt + 2 * i + j)))
    for s in range(8):
        e("v_add_u32 %s, 0x10000, %s" % (vr(A_TB + s), vr(A_TA + s)))
    OH = [A_OS0, A_OS1, A_Q, A_S]
    ops = []
    for t in range(8):
        slot = (4 + t) & 7
        ta = A_TB if slot >= 4 else A_TA
        base = (slot & 3) * 16384
        hf, hh = t >> 2, t & 3
        for kk in range(4):
            for c in range(4):
                d = A_O + 32 * hf + 4 * c
                ops.append((tr_reads(ta, 4 * (kk >> 1) + c, kk & 1, base),
                            [(d + 16 * qt, OH[hh] + 16 * qt + 4 * kk, None if (hh == 0 and kk == 0) else d + 16 * qt) for qt in range(nt)]))
    LA = 7
    e("s_waitcnt lgkmcnt(0)")
    if cfg.get("tailprio", 2):
        e("s_setprio %d" % cfg.get("tailprio", 2))
    for i in range(LA):
        for (mn, sub, nr, addr, off) in ops[i][0]:
            e("%s %s, %s offset:%d" % (mn, vr(A_F + 4 * i + sub, nr), vr(addr), off))
    pack(A_S)
    e("v_lshl_add_u32 %s, v0, 4, %s" % (vr(A_PA), sr(S_M0KV)))
    e("v_mov_b32 %s, 0x80000000" % vr(A_PP))
    e("s_mov_b32 %s, %s" % (sr(S_CH), sr(S_HG)))
    e("s_lshl_b32 %s, %s, 14" % (sr(S_T2), sr(S_HG)))
    e("s_mov_b32 %s, 0" % sr(S_PO))
    e("s_mov_b32 %s, 0" % sr(S_SIG))
    e("s_mov_b32 %s, 4" % sr(S_CNT))
    if stamps == 3:
        stamp(e, cfg)

    def nextchunk():
        return ["s_add_u32 %s, %s, 1" % (sr(S_CH), sr(S_CH)), "s_and_b32 %s, %s, 7" % (sr(S_CH), sr(S_CH)),
                "s_lshl_b32 %s, %s, 17" % (sr(S_PO), sr(S_CH)), "s_add_u32 %s, %s, %s" % (sr(S_PO), sr(S_PO), sr(S_T2))]

    fill, mid = {}, {}
    sig = cfg.get("sigtile", 3)
    for hf, addr, at in ((1, A_PP, 0), (0, A_PA, 64)):
        for k in range(2 * nt):
            stg, src = A_STG[k & 1], A_O + 32 * hf + 8 * k
            c = ["v_cvt_pk_bf16_f32 %s, %s, %s" % (vr(stg + (j ^ (2 * hf))), vr(src + 2 * j), vr(src + 2 * j + 1)) for j in range(4)]
            stx = "buffer_store_dwordx4 %s, %s, %s, %s offen offset:%d %s" % (vr(stg, 4), vr(addr), sr(S_P, 4), sr(S_PO), k * 1024, stpol)
            if cfg.get("epi", 0) == 0:
                p0 = at + 3 + 3 * k
                fill[p0] = c[:2]
                fill[p0 + 1] = c[2:]
                fill[p0 + 2] = [stx]
            elif cfg["epi"] == 1:
                p0 = at + 3 + 4 * k
                for j in range(4):
                    mid[p0 + j] = [c[j]]
                fill[p0 + 3] = [stx]
            elif cfg["epi"] == 2:
                p0 = at + 3 + 3 * k
                for j in range(2):
                    mid[p0 + j] = [c[2 * j]]
                    fill[p0 + j] = [c[2 * j + 1]]
                mid[p0 + 2] = [stx]
        for j, x in enumerate(nextchunk()):
            fill[at + 20 + j] = [x]
        fill[at + 16 * sig - 1] = [] if cfg.get("d_nowait") else ["s_waitcnt vmcnt(0)"]
        if nt == 1:
            fill[at + 16 * sig] = ["v_mov_b32 v1, %s" % sr(S_SIG), "s_add_u32 %s, %s, 1" % (sr(S_SIG), sr(S_SIG)),
                                   "buffer_store_dword v1, %s, %s, 0 offen sc1" % (vr(A_FA), sr(S_FL, 4))]
    fill[26] = ["v_mov_b32 %s, %s" % (vr(A_PP), vr(A_PA))]
    fill[124] = ["s_sub_u32 %s, %s, 1" % (sr(S_CNT), sr(S_CNT))]
    fill[125] = ["s_cmp_lg_u32 %s, 0" % sr(S_CNT)]
    e.raw(".p2align 3")
    e.label(P + "_op")
    stream(e, ops, A_F, 8, LA, pre_issued=LA, next_ops=ops, fill=fill, bar_after=set(range(15, 128, 16)), mid=mid, wevery=cfg.get("opw", 2))
    if stamps == 3:
        stamp(e, cfg)
        e("s_cmp_lg_u32 %s, 0" % sr(S_CNT))
    e("s_cbranch_scc1 %s_op" % P)
    e("s_nop 7")
    for f in range(4 * nt):
        e("ds_write_b128 %s, %s offset:%d" % (vr(A_QA), vr(A_O + 32 + 4 * f, 4), f * 1024))
    e("s_waitcnt lgkmcnt(0)")
    e("s_barrier")
    if stamps:
        stamp(e, cfg)
        e("s_waitcnt vmcnt(0)")
        e("s_barrier")
        stamp(e, cfg)
        e("s_cmp_lg_u32 %s, 3" % sr(S_W))
        e("s_cbranch_scc1 L_end")
        e("s_mov_b32 s%d, s24" % S_WS)
        e("s_mov_b32 s%d, s25" % (S_WS + 1))
        e("s_mov_b32 s%d, %d" % (S_WS + 2, WS_BYTES))
        e("s_mov_b32 s%d, 0x20000" % (S_WS + 3))
        e("s_lshl_b32 %s, s2, 9" % sr(S_T0))
        e("s_add_u32 %s, %s, %d" % (sr(S_T0), sr(S_T0), WS_BYTES - 65536 - 131072))
        e("v_lshl_add_u32 v3, v0, 3, %s" % sr(S_T0))
        e("buffer_store_dwordx2 v[6:7], v3, %s, 0 offen" % sr(S_WS, 4))
        e("s_memrealtime %s" % sr(S_ST + 2, 2))
        e("s_waitcnt lgkmcnt(0)")
        for j in range(4):
            e("v_mov_b32 v%d, s%d" % (8 + j, S_ST + j))
        e("s_lshl_b32 %s, s2, 4" % sr(S_T0))
        e("s_add_u32 %s, %s, %d" % (sr(S_T0), sr(S_T0), WS_BYTES - 65536))
        e("v_mov_b32 v3, %s" % sr(S_T0))
        e("buffer_store_dwordx4 v[8:11], v3, %s, 0 offen" % sr(S_WS, 4))
        if cfg.get("diag"):
            e("s_mov_b32 s12, s34")
            e("s_mov_b32 s13, s35")
            e("s_mov_b32 s14, 64")
            e("s_mov_b32 s15, 0x20000")
            e("v_lshlrev_b32 v12, 24, v0")
            e("v_not_b32 v13, v8")
            e("buffer_atomic_umax v10, v12, s[12:15], 0 offen offset:56 sc1")
            e("buffer_atomic_umax v13, v12, s[12:15], 0 offen offset:60 sc1")
            e("s_cmp_lg_u32 s2, 0")
            e("s_cbranch_scc1 L_end")
            e("s_mov_b32 s14, 56")
            e("v_sub_u32 v14, v7, v8")
            e("v_lshlrev_b32 v12, 2, v0")
            e("buffer_atomic_add v14, v12, s[12:15], 0 offen sc1")
    e("s_endpgm")


def gen_B(e, cfg, nt):
    P = "L_B%d" % nt
    kvpol, wpol, opol = cfg.get("kvpol", "nt"), cfg.get("wpol", ""), cfg.get("opol", "")
    e.label(P)
    if cfg.get("bprio", 0):
        e("s_setprio %d" % cfg["bprio"])
    emit_voff(e, B_VK, B_VV, B_VWQ, None, B_VWO, B_F, cfg.get("kvsh", 12))
    emit_ta(e, B_TA, B_T0, B_T1, L_W)
    e("v_and_b32 v1, 15, v0")
    e("v_lshrrev_b32 v2, 5, v0")
    e("v_bfe_u32 v3, v0, 4, 1")
    e("v_xor_b32 %s, v2, v1" % vr(B_T0))
    e("v_lshlrev_b32 %s, 4, %s" % (vr(B_T0), vr(B_T0)))
    e("v_lshl_add_u32 %s, v1, 8, %s" % (vr(B_T0), vr(B_T0)))
    e("v_lshl_add_u32 %s, v3, 3, %s" % (vr(B_T0), vr(B_T0)))
    e("v_add_u32 %s, %s, %s" % (vr(B_XA), sr(S_M0X), vr(B_T0)))
    e("v_add_u32 %s, 0x%x, %s" % (vr(B_T3), L_Q, vr(B_XA)))
    e("s_add_u32 %s, %s, %d" % (sr(S_T0), sr(S_M0X), L_Q))
    e("v_lshl_add_u32 %s, v2, 8, %s" % (vr(B_QA), sr(S_T0)))
    e("v_lshl_add_u32 %s, v1, 4, %s" % (vr(B_QA), vr(B_QA)))
    e("v_lshl_add_u32 %s, v3, 3, %s" % (vr(B_QA), vr(B_QA)))
    e("s_mov_b32 %s, 0x3e0293ee" % sr(S_SCALE))
    e("s_mov_b32 %s, 0x3e0293ee" % sr(S_SCALE + 1))
    e.many(w_advance(8))
    e("s_and_b32 %s, s3, 0x60000" % sr(S_ITEM))
    e("s_xor_b32 %s, s3, %d" % (sr(S_KVOFF), kvoff(1, cfg)))
    e("s_waitcnt lgkmcnt(0)")
    emit_srd(e, ["K", "V", "WQ", "WO", "P", "FL", "DBG", "OUT"])

    KM = ["s3"] * 4
    for i, sh in enumerate(cfg.get("kvrot2", [])):
        d = "s%d" % (4 + i)
        e("s_lshr_b32 %s, s2, %d" % (d, sh[0]))
        for x in sh[1:]:
            e("s_lshr_b32 s28, s2, %d" % x)
            e("s_xor_b32 %s, %s, s28" % (d, d))
        e("s_and_b32 %s, %s, 7" % (d, d))
        e("s_lshl_b32 %s, %s, 14" % (d, d))
        e("s_or_b32 %s, %s, %s" % (d, d, sr(S_ITEM)))
        KM[1 + i] = d

    H0 = 2

    def wlast(q):
        return wuse(q) if H0 == 4 else 2 * q

    def wuse(q):
        return 2 * q

    def piece(kind, q, j):
        if kind == "kv":
            ins = dma(B_VV + (j & 1), S_V, sr(S_KVOFF), j * 1024, kvpol) if q & 1 else dma(B_VK + j, S_K, sr(S_KVOFF), j * 1024, kvpol)
            post = ["s_xor_b32 %s, %s, %d" % (sr(S_KVOFF), KM[((q + 1) >> 4) & 3], kvoff((q + 1) // 2, cfg))] if (q & 1 and j == 3) else []
            return ((q & 3) * 16384, [], ins, post, q, q - 3)
        if kind == "w":
            return (L_W + (q & 3) * 16384, [], dma(B_VWQ + j, S_WQ, sr(S_WOFF), j * 1024, wpol),
                    w_advance(q + 8) if j == 3 else [], wuse(q), wlast(q - 4) + 1)
        if kind == "wo":
            setup = ["s_add_u32 %s, %s, %d" % (sr(S_T1), sr(S_HG), 1 + (q >> 2)), "s_and_b32 %s, %s, 7" % (sr(S_T1), sr(S_T1)),
                     "s_lshl_b32 %s, %s, 7" % (sr(S_T1), sr(S_T1)), "s_or_b32 %s, %s, %s" % (sr(S_T1), sr(S_T1), sr(S_ITEM)), "s_xor_b32 %s, %s, %d" % (sr(S_T1), sr(S_T1), (q & 3) * 131072)] if j == 0 else []
            return (((4 + q) & 7) * 16384, setup, dma(B_VWO + j, S_WO, sr(S_T1), j * 1024, opol), [], max(64, 63 + q),
                    wlast(20 + q) + 1 if q < 4 else max(57 + q, cfg.get("wostart", 62)))

    seq = []
    for q in range(0, 64):
        seq += [piece("kv", q, j) for j in range(4)]
        if q <= 46:
            seq += [piece("w", (q + 1) // 2, j) for j in ((0, 1) if q & 1 else (2, 3))]
        elif q >= 48:
            seq.append(piece("wo", (q - 48) // 4, (q - 48) % 4))
    kv_end = len(seq)
    pfph = cfg.get("pfphase", 62)
    def pf_piece(x, ph, part=None):
        setup = ["s_xor_b32 %s, %s, %d" % (sr(S_T2), sr(S_B), x), "s_lshl_b32 %s, %s, 15" % (sr(S_T2), sr(S_T2)),
                 "s_add_u32 %s, %s, %s" % (sr(S_T2), sr(S_T2), sr(S_M0X)), "v_lshlrev_b32 v1, 7, v0"]
        if part is not None:
            setup += ["v_lshrrev_b32 v3, 4, v0", "v_xor_b32 v3, %d, v3" % part, "v_lshl_add_u32 v1, v3, 24, v1"]
        return (None, setup, "buffer_load_dword v2, v1, %s, %s offen" % (sr(S_WO, 4), sr(S_T2)), [], 1000, ph)

    pfs = [pf_piece(x, pfph) for x in cfg.get("pfx", [0])]
    for part, q in enumerate(cfg.get("pfq", [])):
        at = max(i for i, x in enumerate(seq) if x[4] == q and x[5] == q - 3) + 1
        seq.insert(at, pf_piece(0, q - 3, part))
    kv_end = len(seq)
    for t in range(4, 32):
        x = [piece("wo", t, j) for j in range(4)]
        if pfs and x[0][5] > pfph:
            seq += pfs
            pfs = None
        seq += x
    ld = Loads()
    state = {"pos": 10, "m0": None}

    def take(n, p, cap, lo=None):
        groups = []
        for k in range(n):
            m0, setup, ins, post, need, earliest = seq[state["pos"]]
            assert earliest <= p, (p, state["pos"], earliest)
            g = list(setup)
            if m0 is not None and m0 != state["m0"]:
                g.append("s_add_u32 m0, %s, %d" % (sr(S_M0KV), m0))
                state["m0"] = m0
                if cap is None:
                    g.append("s_nop 0")
            if lo is not None:
                c = lo[state["pos"] % len(lo)] if isinstance(lo, (list, tuple)) else lo
                g += ["s_cbranch_vccz %s_c%d" % (P, state["pos"]), "s_waitcnt vmcnt(%d)" % c, "%s_c%d:" % (P, state["pos"])]
            if cap is not None:
                c = cap[state["pos"] % len(cap)] if isinstance(cap, (list, tuple)) else cap
                g.append("s_waitcnt vmcnt(%d)" % c)
            g.append(ins)
            g += post
            ld.add(need)
            state["pos"] += 1
            groups.append(g)
        return groups

    def bar(p):
        assert all(x[4] > p for x in seq[state["pos"]:state["pos"] + 40]), p
        e("s_waitcnt vmcnt(%d)" % min(ld.wait_for(p), 63))
        e("s_barrier")

    def qp_ops(st):
        ops = []
        for ks in range(2):
            for s in range(8):
                ops.append((tr_reads(B_TA, s, ks, (st & 3) * 16384),
                            [(B_ACC + 32 * qt + 4 * s, B_X + 64 * qt + 4 * (2 * st + ks),
                              None if (st == 0 and ks == 0) else B_ACC + 32 * qt + 4 * s) for qt in range(nt)]))
        return ops

    def qp_halves(h0, h1, groups, upfront):
        for g in groups[:upfront]:
            e.many(g)
        groups = groups[upfront:]
        ops = [o for h in range(h0, h1) for o in qp_ops(h >> 1)[8 * (h & 1):8 * (h & 1) + 8]]
        fill = {}
        for g, lst in enumerate(groups):
            fill.setdefault((g + 1) * len(ops) // len(groups) - 1, []).extend(lst)
        stream(e, ops, B_F, 8, 7, fill=fill)

    def q_write(groups, lo=0, hi=8, pk=False):
        ks = [8 * qt + s for s in range(lo, hi) for qt in range(nt)]
        at = {}
        for g, lst in enumerate(groups):
            if cfg.get("qpos", 3) == 0 or pk:
                at.setdefault(g * len(ks) // len(groups), []).extend(lst)
            elif cfg.get("qpos", 3) == 1:
                at.setdefault((g + 1) * len(ks) // len(groups), []).extend(lst)
            else:
                at.setdefault(min(len(ks), g * len(ks) // (len(groups) - cfg.get("qpos", 3) + 1)), []).extend(lst)
        def mul(k):
            a = B_ACC + 4 * k
            if cfg.get("pkB", False) or (pk and cfg.get("pkP", True)):
                return ["v_pk_mul_f32 %s, %s, %s" % (vr(a + 2 * j, 2), sr(S_SCALE, 2), vr(a + 2 * j, 2)) for j in range(2)]
            return ["v_mul_f32 %s, %s, %s" % (vr(a + j), sr(S_SCALE), vr(a + j)) for j in range(4)]

        def cvt(k):
            a, d = B_ACC + 4 * k, B_F + 2 * k
            return ["v_cvt_pk_bf16_f32 %s, %s, %s" % (vr(d + j), vr(a + 2 * j), vr(a + 2 * j + 1)) for j in range(2)]

        def wr(k):
            return ["ds_write_b64 %s, %s offset:%d" % (vr(B_QA), vr(B_F + 2 * k, 2), k * 512)]

        if cfg.get("qprio", 1) and not pk:
            e("s_setprio %d" % cfg.get("qprio", 1))
        lag = cfg.get("qlag", 0)
        for i in range(len(ks) + 2 * lag):
            e.many(at.get(i, []))
            if i < len(ks):
                e.many(mul(ks[i]))
            if lag <= i < len(ks) + lag:
                e.many(cvt(ks[i - lag]))
            if i >= 2 * lag:
                e.many(wr(ks[i - 2 * lag]))
        e.many(at.get(len(ks) + 2 * lag, []))
        if cfg.get("qprio", 1) and not pk:
            e("s_setprio 0")
        if hi == 8:
            e("s_waitcnt lgkmcnt(0)")

    QS = cfg.get("qsplit", {4: (0, 2, 6, 8), 3: (0, 0, 3, 8), 2: (0, 0, 0, 8)}[H0])

    def phase_work(p, g):
        h0, h1 = (0, H0) if p == 0 else (min(16, H0 + p - 2), min(16, H0 + p))
        nq = QS[p - 12] - QS[p - 13] if p >= 13 else 0
        if p % 2 == 0 and h1 > h0:
            k = len(g) if not nq else (len(g) * 2 + 2) // 3
            qp_halves(h0, h1, g[:k], cfg.get("upfront0", 3) if p == 0 else min(up, k - 1))
            if nq:
                e("s_nop 3")
                q_write(g[k:], QS[p - 13], QS[p - 12])
        elif nq:
            q_write(g, QS[p - 13], QS[p - 12])
        else:
            for x in g:
                e.many(x)

    ops, pre = [], {}
    for st in range(8):
        ops += qp_ops(st)
        pre[16 * st] = ["s_waitcnt vmcnt(0)", "s_barrier"] if (st == 0 and nt == 2) else ["s_barrier"]
        if st % 2 == 0:
            jx = st // 2
            big = XREG[jx] >= 65536
            for kk in range(4):
                lst = []
                for u in range(2):
                    t = B_T0 + u
                    lst.append("v_xor_b32 %s, 0x%x, %s" % (vr(t), (4 * kk + 2 * u) << 4, vr(B_T3 if big else B_XA)))
                    for qt in range(nt):
                        lst.append("ds_read_b64 %s, %s offset:%d" % (vr(B_X + 64 * qt + 4 * (4 * jx + kk) + 2 * u, 2), vr(t), (0 if big else XREG[jx]) + qt * 4096))
                pre.setdefault(16 * st + 2 * kk, []).extend(lst)
    NT = cfg.get("ntab", [9, 4, 8, 4, 8, 4, 7, 4, 8, 4, 8, 4, 8, 4, 6, 6])
    assert sum(NT) == 96
    o0 = cfg.get("o0", 2)
    up = cfg.get("upfront", 4)
    if cfg.get("proq", False):
        last = ops[112:]
        ops[112:] = [last[8 * ks + s_] for s_ in range(8) for ks in range(2)]
        fill = {}

        def conv(s_, stg):
            out = []
            for qt in range(nt):
                a, d = B_ACC + 32 * qt + 4 * s_, stg + 2 * qt
                out += ["v_mul_f32 %s, %s, %s" % (vr(a + j), sr(S_SCALE), vr(a + j)) for j in range(4)]
                out += ["v_cvt_pk_bf16_f32 %s, %s, %s" % (vr(a), vr(a), vr(a + 1)), "v_cvt_pk_bf16_f32 %s, %s, %s" % (vr(a + 1), vr(a + 2), vr(a + 3))]
            return out

        nd = 5 if nt == 2 else 4
        lag = 3 if nt == 2 else 6
        for s_ in range(nd):
            c_ = conv(s_, 0)
            h = len(c_) // 2
            fill[112 + 2 * s_ + 1 + lag] = c_[:h]
            fill[112 + 2 * s_ + 2 + lag] = c_[h:]
        stream(e, ops, B_F, 8, 7, pre_read=pre, fill=fill)
        g = take(cfg.get("pre0", 2 + o0), -1, None)
        for s_ in range(8):
            if s_ >= nd:
                e.many(conv(s_, 0))
            for qt in range(nt):
                e("ds_write_b64 %s, %s offset:%d" % (vr(B_QA), vr(B_ACC + 32 * qt + 4 * s_, 2), (8 * qt + s_) * 512))
        for x in g:
            e.many(x)
        e("s_waitcnt lgkmcnt(0)")
    else:
        stream(e, ops, B_F, 8, 7, pre_read=pre)
        e("s_nop 3")
        q_write(take(cfg.get("pre0", 2 + o0), -1, None), pk=True)
    bar(0)
    CAPS = cfg.get("caps", [6.5] * 3 + [6] * 5 + [5.5] * 2 + [5] * 12)
    acc = [0.0]

    def capof(x):
        if x is None or x == int(x):
            return x
        lo = int(x)
        per = {0.25: [lo, lo, lo, lo + 1], 0.5: [lo, lo + 1], 0.75: [lo, lo + 1, lo + 1, lo + 1]}[x - lo]
        return per

    slow = cfg.get("slowbr")
    if slow:
        e("s_cmp_eq_u32 %s, %d" % (sr(S_BR), slow[0]))
        e("s_cselect_b64 vcc, -1, 0")
    for p in range(0, 44):
        phase_work(p & 15, take((cfg.get("ntab0", NT) if p < 16 else NT)[p & 15] + (2 + o0 - cfg.get("pre0", 2 + o0) if p == 0 else 0), p, capof(CAPS[p // 2]), slow[1] if slow else None))
        bar(p + 1)
    B_Z, B_PA, B_LA, B_OA, B_POLL = B_X, B_X + 1, B_X + 2, B_X + 4, B_X + 6
    B_OWN = B_ACC
    st = {}

    def dbuf(k, f):
        return B_X + 16 + 28 * f + 4 * k

    def poll_ld(k, alt=0):
        if k < 0:
            e("buffer_load_dword %s, %s, %s, 0 offen sc1" % (vr(B_POLL), vr(B_Z), sr(S_DBG, 4)))
        else:
            e("buffer_load_dword %s, %s, %s, %s offen sc1" % (vr(B_POLL + alt), vr(B_Z), sr(S_FL, 4), sr(S_T4 if alt else S_T3)))

    def poll_issue(k, alt=0):
        if nt != 1:
            return
        if k >= 0:
            t = sr(S_T4 if alt else S_T3)
            e("s_sub_u32 %s, %s, %d" % (t, sr(S_HG), 1 + k))
            e("s_and_b32 %s, %s, 7" % (t, t))
            e("s_lshl_b32 %s, %s, 7" % (t, t))
        poll_ld(k, alt)
        st["poll", k] = ld.add(1000)

    def poll_check(k, alt=0, want=None):
        if nt != 1:
            return
        lab = "%s_poll%d_%d" % (P, k + 1, alt)
        if want is None:
            want = 8 if k < 0 else k + 1
        e("s_waitcnt vmcnt(%d)" % ld.younger(st["poll", k]))
        e.label(lab)
        e("v_readfirstlane_b32 %s, %s" % (sr(S_T0), vr(B_POLL + alt)))
        e("s_cmp_ge_u32 %s, %d" % (sr(S_T0), 0 if cfg.get("d_nospin") else want))
        e("s_cbranch_scc1 %s_ok" % lab)
        poll_ld(k, alt)
        e("s_waitcnt vmcnt(0)")
        e("s_sub_u32 %s, %s, 1" % (sr(S_CNT), sr(S_CNT)))
        e("s_cbranch_scc0 %s" % lab)
        e("s_mov_b32 %s, 0" % sr(S_CNT))
        e.label(lab + "_ok")

    def fetch(k):
        e("s_sub_u32 %s, %s, %d" % (sr(S_T2), sr(S_HG), 1 + k))
        e("s_and_b32 %s, %s, 7" % (sr(S_T2), sr(S_T2)))
        e("s_lshl_b32 %s, %s, 14" % (sr(S_T2), sr(S_T2)))
        e("s_add_u32 %s, %s, %s" % (sr(S_T2), sr(S_T2), sr(S_PO)))
        for f in range(2 * nt):
            e("buffer_load_dwordx4 %s, %s, %s, %s offen offset:%d sc1" % (vr(dbuf(k, f), 4), vr(B_PA), sr(S_P, 4), sr(S_T2), f * 1024))
            st["data", k] = ld.add(1000)

    B_SEL = B_X + 8

    def accumulate(j):
        for f in range(2 * nt):
            d = B_ACC + 8 * f + 4 * ((j + 1) & 1)
            if j == -1:
                e(mf(d, B_SEL + 4, dbuf(0, f), None))
            elif j == 6:
                e(mf(d, B_SEL, dbuf(6, f), d))
            else:
                e(mf(d, B_SEL + 2, dbuf(j, f) + 2, None if j == 0 else d))

    def arrived(k):
        e("s_waitcnt vmcnt(%d)" % min(62, ld.younger(st["data", k])))

    N3 = cfg.get("ntab3", [6, 4, 6, 4, 8, 3, 5, 4, 5, 4, 5, 4, 5, 4, 6, 4, 6])
    cap3 = cfg.get("cap3", 6)
    pi, pc = cfg.get("pollsched", (73, 76))
    sent = cfg.get("sent", False)
    sw = cfg.get("sentwant", 4)
    lastc = 94 if sent else cfg.get("lastc", 95)
    for p in range(44, 96):
        if p == 48:
            if cfg.get("poll1", True):
                e("v_lshlrev_b32 %s, 24, v0" % vr(B_Z))
            else:
                e("v_mov_b32 %s, 0" % vr(B_Z))
            e("s_mov_b32 %s, 0x40000" % sr(S_CNT))
            e("v_lshl_add_u32 %s, v0, 4, %s" % (vr(B_PA), sr(S_M0KV)))
            e("s_add_u32 %s, %s, %d" % (sr(S_T0), sr(S_M0X), L_Q))
            e("v_lshl_add_u32 %s, v0, 4, %s" % (vr(B_LA), sr(S_T0)))
            e("s_lshl_b32 %s, %s, 17" % (sr(S_PO), sr(S_HG)))
            e("s_lshl_b32 %s, %s, 16" % (sr(S_T0), sr(S_W)))
            e("s_lshl_b32 %s, %s, 10" % (sr(S_T2), sr(S_BR)))
            e("s_add_u32 %s, %s, %s" % (sr(S_T0), sr(S_T0), sr(S_T2)))
            e("s_lshl_b32 %s, %s, 7" % (sr(S_T2), sr(S_HG)))
            e("s_add_u32 %s, %s, %s" % (sr(S_T0), sr(S_T0), sr(S_T2)))
            if cfg.get("trout", True):
                e("v_lshrrev_b32 v1, 3, v0")
                e("v_and_b32 v2, 7, v0")
                e("v_lshl_add_u32 %s, v1, 11, %s" % (vr(B_OA), sr(S_T0)))
                e("v_lshl_add_u32 %s, v2, 4, %s" % (vr(B_OA), vr(B_OA)))
                e("s_add_u32 %s, %s, %d" % (sr(S_T0), sr(S_M0X), L_Q))
                e("v_xor_b32 v3, v1, v2")
                e("v_lshl_add_u32 %s, v1, 7, %s" % (vr(B_OA + 1), sr(S_T0)))
                e("v_lshl_add_u32 %s, v3, 4, %s" % (vr(B_OA + 1), vr(B_OA + 1)))
                e("v_and_b32 v1, 15, v0")
                e("v_lshl_add_u32 %s, v1, 7, %s" % (vr(B_VWQ), sr(S_T0)))
                e("v_lshrrev_b32 v3, 5, v0")
                e("v_xor_b32 v3, v3, v2")
                e("v_lshl_add_u32 %s, v3, 4, %s" % (vr(B_VWQ), vr(B_VWQ)))
                e("v_bfe_u32 v1, v0, 4, 1")
                e("v_lshl_add_u32 %s, v1, 3, %s" % (vr(B_VWQ), vr(B_VWQ)))
                for c_ in range(1, 4):
                    e("v_xor_b32 %s, %d, %s" % (vr(B_VWQ + c_), c_ << 5, vr(B_VWQ)))
                for i in range(1, 4):
                    e("s_mov_b32 s%d, %d" % (S_X + i, i * 16384))
            else:
                e("v_and_b32 v1, 15, v0")
                e("v_lshl_add_u32 %s, v1, 11, %s" % (vr(B_OA), sr(S_T0)))
                e("v_lshrrev_b32 v1, 5, v0")
                e("v_lshl_add_u32 %s, v1, 4, %s" % (vr(B_OA), vr(B_OA)))
                e("v_bfe_u32 v1, v0, 4, 1")
                e("v_lshl_add_u32 %s, v1, 5, %s" % (vr(B_OA), vr(B_OA)))
                e("v_add_u32 %s, 0x8000, %s" % (vr(B_OA + 1), vr(B_OA)))
            e("v_bfe_u32 v1, v0, 2, 2")
            e("v_lshrrev_b32 v2, 4, v0")
            e("v_and_b32 v3, 1, v0")
            e("v_lshlrev_b32 v3, 4, v3")
            e("v_mov_b32 %s, 0x3f80" % vr(B_T0))
            e("v_lshlrev_b32 v3, v3, %s" % vr(B_T0))
            e("v_cmp_eq_u32 vcc, v1, v2")
            e("v_bfe_u32 v1, v0, 1, 1")
            e("v_mov_b32 %s, 0" % vr(B_SEL))
            e("v_cndmask_b32 v3, 0, v3, vcc")
            e("v_cmp_eq_u32 vcc, 0, v1")
            e("v_mov_b32 %s, 0" % vr(B_SEL + 1))
            e("v_mov_b32 %s, 0" % vr(B_SEL + 6))
            e("v_cndmask_b32 %s, 0, v3, vcc" % vr(B_SEL + 2))
            e("v_mov_b32 %s, 0" % vr(B_SEL + 7))
            e("v_sub_u32 %s, v3, %s" % (vr(B_SEL + 3), vr(B_SEL + 2)))
            e("v_mov_b32 %s, %s" % (vr(B_SEL + 4), vr(B_SEL + 2)))
            e("v_mov_b32 %s, %s" % (vr(B_SEL + 5), vr(B_SEL + 3)))
            for j in range(4):
                e("v_mov_b32 %s, -1" % vr(B_T0 + j))
        avail = 0
        while state["pos"] + avail < len(seq) and seq[state["pos"] + avail][5] <= p:
            avail += 1
        if p <= 60:
            n = min(avail, N3[p - 44])
        else:
            n = min(avail, 10)
        if cfg.get("verbose") and nt == 2:
            print(p, "pos", state["pos"], "avail", avail, "n", n, "needs", [x[4] for x in seq[state["pos"]:state["pos"] + n]], file=sys.stderr)
        g = take(n, p, capof(cfg.get("cap2", 4) if p < 48 else cap3) if state["pos"] < kv_end else None)
        if p < 48:
            phase_work(p - 32, g)
        else:
            for x in g:
                e.many(x)
        if p == 64:
            poll_issue(-1)
        if p == 68:
            poll_check(-1)
        if p == cfg.get("sentphase", 78) and sent:
            e("s_add_u32 %s, %s, 1" % (sr(S_T2), sr(S_HG)))
            e("s_and_b32 %s, %s, 7" % (sr(S_T2), sr(S_T2)))
            e("s_lshl_b32 %s, %s, 14" % (sr(S_T2), sr(S_T2)))
            e("s_add_u32 %s, %s, %s" % (sr(S_T2), sr(S_T2), sr(S_PO)))
            for f in range(2 * nt):
                e("buffer_store_dwordx4 %s, %s, %s, %s offen offset:%d sc1" % (vr(B_T0, 4), vr(B_PA), sr(S_P, 4), sr(S_T2), f * 1024))
                ld.add(67 + 4 * sw)
        for k in range(6):
            if p == min(pc + 4 * k, lastc) + 1:
                fetch(k)
        if p == 95 and sent:
            fetch(6)
        if sent and sw > 1:
            if p == cfg.get("spoll", (85, 88))[0]:
                poll_issue(0, 1)
            if p == cfg.get("spoll", (85, 88))[1]:
                poll_check(0, 1, sw)
        for k in range(6):
            if p == pi + 4 * k:
                poll_issue(k)
            if p == min(pc + 4 * k, lastc):
                poll_check(k)
        if p == 95 and cfg.get("early6") and not sent:
            poll_issue(6)
        bar(p + 1)
    late = [k for k in range(6) if min(pc + 4 * k, lastc) > 95]
    if not sent:
        if late:
            poll_issue(6, 1)
        elif not cfg.get("early6"):
            poll_issue(6)
        for k in range(6):
            if min(pc + 4 * k, lastc) == 95:
                fetch(k)
    arrived(4)
    for j in range(-1, 4):
        accumulate(j)
    if not sent:
        for k in late:
            poll_check(k)
        poll_check(6, 1 if late else 0)
    e("s_barrier")
    if not sent:
        for k in late:
            fetch(k)
        fetch(6)
    for f in range(4 * nt):
        e("ds_read_b128 %s, %s offset:%d" % (vr(B_F + 4 * f, 4), vr(B_LA), f * 1024))
    e("s_waitcnt lgkmcnt(0)")
    for j in range(16 * nt):
        e("v_add_f32 %s, %s, %s" % (vr(B_ACC + j), vr(B_ACC + j), vr(B_F + j)))
    e("s_nop 0")
    arrived(5)
    accumulate(4)
    arrived(6)
    if sent:
        lab = P + "_last"
        e.label(lab)
        r = [dbuf(6, f) + j for f in range(2 * nt) for j in range(4)]
        e("v_max3_u32 v1, %s, %s, %s" % (vr(r[0]), vr(r[1]), vr(r[2])))
        for j in range(3, len(r) - 1, 2):
            e("v_max3_u32 v1, v1, %s, %s" % (vr(r[j]), vr(r[j + 1])))
        e("v_max_u32 v1, v1, %s" % vr(r[-1]))
        e("v_cmp_eq_u32 vcc, -1, v1")
        e("s_cbranch_vccz %s_ok" % lab)
        for f in range(2 * nt):
            e("buffer_load_dwordx4 %s, %s, %s, %s offen offset:%d sc1" % (vr(dbuf(6, f), 4), vr(B_PA), sr(S_P, 4), sr(S_T2), f * 1024))
        e("s_waitcnt vmcnt(0)")
        e("s_sub_u32 %s, %s, 1" % (sr(S_CNT), sr(S_CNT)))
        e("s_cbranch_scc0 %s" % lab)
        e.label(lab + "_ok")
    accumulate(5)
    accumulate(6)
    e("s_nop %d" % (1 if nt == 2 else 4))
    if cfg.get("trout", True):
        for k in range(4 * nt):
            a = B_ACC + 4 * k
            e("v_cvt_pk_bf16_f32 %s, %s, %s" % (vr(a), vr(a), vr(a + 1)))
            e("v_cvt_pk_bf16_f32 %s, %s, %s" % (vr(a + 1), vr(a + 2), vr(a + 3)))
            e("ds_write_b64 %s, %s offset:%d" % (vr(B_VWQ + (k & 3)), vr(a, 2), (k >> 2) * 2048))
            if k & 3 == 3:
                for i in range(2):
                    e("ds_read_b128 %s, %s offset:%d" % (vr(B_X + 16 + 8 * (k >> 2) + 4 * i, 4), vr(B_OA + 1), (2 * (k >> 2) + i) * 1024))
        for i in range(2 * nt):
            e("s_waitcnt lgkmcnt(%d)" % ((7 - i if i < 2 else 3 - i) if nt == 2 else 1 - i))
            e("buffer_store_dwordx4 %s, %s, %s, %s offen %s" % (vr(B_X + 16 + 4 * i, 4), vr(B_OA), sr(S_OUT, 4), sr(S_X + i) if i else "0", cfg.get("outpol", "sc1")))
    else:
        e("s_nop 3")
        for j in range(8 * nt):
            e("v_cvt_pk_bf16_f32 %s, %s, %s" % (vr(B_F + j), vr(B_ACC + 2 * j), vr(B_ACC + 2 * j + 1)))
        e("s_nop 1")
        for f in range(2 * nt):
            e("v_permlane16_swap_b32 %s, %s" % (vr(B_F + 4 * f), vr(B_F + 4 * f + 2)))
            e("v_permlane16_swap_b32 %s, %s" % (vr(B_F + 4 * f + 1), vr(B_F + 4 * f + 3)))
        e("s_nop 1")
        for f in range(2 * nt):
            e("buffer_store_dwordx4 %s, %s, %s, 0 offen offset:%d %s" % (vr(B_F + 4 * f, 4), vr(B_OA + (f >> 1)), sr(S_OUT, 4), (f & 1) * 64, cfg.get("outpol", "sc1")))
    if cfg.get("stamps"):
        e("s_waitcnt vmcnt(0)")
        e("s_barrier")
    e("s_endpgm")


def gen(cfg):
    e = Em()
    DIAG[0] = bool(cfg.get("diag"))
    e.raw(HEADER.rstrip("\n"))
    e.raw("; @launch grid=(256,1,1) block=(512,1,1) lds=%d" % LDS_BYTES)
    e.raw(DOC)
    e.raw('.amdgcn_target "amdgcn-amd-amdhsa--gfx950"')
    e.raw(".text")
    gen_entry(e, cfg)
    gen_pro(e, cfg, 2)
    gen_A(e, cfg, 2)
    gen_pro(e, cfg, 1)
    gen_A(e, cfg, 1)
    gen_B(e, cfg, 2)
    gen_B(e, cfg, 1)
    e.label("L_end")
    e("s_endpgm")
    e.raw('.section .rodata,"a"')
    e.raw(".p2align 6")
    e.raw(""".amdhsa_kernel %s_kernel
  .amdhsa_next_free_vgpr 256
  .amdhsa_next_free_sgpr 102
  .amdhsa_accum_offset 256
  .amdhsa_group_segment_fixed_size 0
  .amdhsa_kernarg_size 104
  .amdhsa_user_sgpr_count 2
  .amdhsa_user_sgpr_kernarg_segment_ptr 1
  .amdhsa_system_sgpr_workgroup_id_x 1
.end_amdhsa_kernel""" % NAME)
    return e.text()


if __name__ == "__main__":
    if len(sys.argv) > 2:
        cfgs = eval(open(sys.argv[2]).read())
        for k, v in cfgs.items():
            open("%s_%s.s" % (sys.argv[1], k), "w").write(gen(v))
        print(" ".join("%s_%s.s" % (sys.argv[1], k) for k in cfgs))
    else:
        open(sys.argv[1], "w").write(gen({}))
```

```python
import sys

NAME = "concat_heads__mha_block_cached__mha_block_cached__near_ridge"
WS_BYTES = 288882688
HEADER = open("header.txt").read()

L_KV = 0
L_W = 65536
L_Q = 131072
LDS_BYTES = 163840
FLAG_OFF = 32 << 20
XREG = [L_Q, 0, 32768, L_Q]

S_X, S_K, S_V, S_WQ, S_WO, S_P, S_FL, S_DBG, S_OUT = 36, 40, 44, 48, 52, 56, 60, 64, 68
S_W, S_T0, S_T1, S_T2, S_T3 = 72, 73, 74, 75, 76
S_KVOFF, S_WOFF, S_M0KV, S_HG, S_CNT, S_ITEM, S_PO, S_CH, S_M0X = 77, 78, 79, 80, 81, 82, 83, 84, 85
S_T4, S_BOUND, S_SIG, S_B, S_BR, S_G = 86, 87, 88, 89, 90, 91
S_SCALE = 92
S_T5, S_ROT = 94, 95
S_ST, S_SI, S_SA, S_WS = 96, 100, 4, 8


DOC = """;
; One workgroup per CU = (branch, batch b, group hg of 4 heads); every product is a transposed bf16 MFMA 16x16x32 whose
; B operand (query rows on the lanes) stays in registers and whose A operand (K, V^T, wq^T, wo^T) comes from LDS.
;   waves 0-3 (A): two 16-row query tiles each (wave 3: one).  Load x / first tiles, then per head S^T = K Q^T, softmax,
;                  Q^T of the next head, and the sum over the 8 head groups of this workgroup's 64 output columns.
; Hand-off between the 8 workgroups of a (branch, b): bf16 partial chunks in d_ws (sc1 stores -> vmcnt(0) -> barrier ->
; progress word; consumer: sc1 poll -> barrier -> sc1 loads).  Progress words are cleared by their owner in this launch
;"""


class Em:
    def __init__(self):
        self.L = []

    def __call__(self, s):
        self.L.append("    " + s)

    def many(self, lst):
        for s in lst:
            if s.endswith(":"):
                self.raw(s)
            else:
                self(s)

    def label(self, s):
        self.L.append(s + ":")

    def raw(self, s):
        self.L.append(s)

    def text(self):
        return "\n".join(self.L) + "\n"


def vr(a, n=1):
    return "v%d" % a if n == 1 else "v[%d:%d]" % (a, a + n - 1)


def sr(a, n=1):
    return "s%d" % a if n == 1 else "s[%d:%d]" % (a, a + n - 1)


def mf(d, a, b, c):
    return "v_mfma_f32_16x16x32_bf16 %s, %s, %s, %s" % (vr(d, 4), vr(a, 4), vr(b, 4), "0" if c is None else vr(c, 4))


def stream(e, ops, frag0, nfrag, la, pre_issued=0, next_ops=None, fill=None, bar_after=None, wevery=2, pre_read=None, mid=None):
    assert la < nfrag
    allops = list(ops) + (list(next_ops[:la]) if next_ops else [])
    n = len(ops)
    pos = {}
    cnt = [0]

    def rd(i):
        out = list(pre_read.get(i, [])) if pre_read else []
        out += ["%s %s, %s offset:%d" % (mn, vr(frag0 + 4 * (i % nfrag) + sub, nr), vr(addr), off)
                for (mn, sub, nr, addr, off) in allops[i][0]]
        cnt[0] += sum(1 for s in out if s.startswith("ds_"))
        pos[i] = cnt[0]
        return out

    issued = 0
    while issued < min(la, len(allops)):
        r = rd(issued)
        if issued >= pre_issued:
            e.many(r)
        issued += 1
    waited = -1
    for i in range(n):
        if i > waited:
            upto = 0 if i == 0 else min(i + wevery - 1, n - 1, issued - 1)
            e("s_waitcnt lgkmcnt(%d)" % min(14, cnt[0] - pos[upto]))
            waited = upto
        ms = [mf(d, frag0 + 4 * (i % nfrag), b, c) for (d, b, c) in ops[i][1]]
        if i & 1:
            ms.reverse()
        rs = []
        if issued < len(allops):
            rs = rd(issued)
            issued += 1
        if mid and i in mid:
            e.many(ms[:1] + rs[:1] + mid[i] + ms[1:] + rs[1:])
        elif len(rs) > 2 and len(ms) == 2:
            k = (len(rs) + 1) // 2
            e.many([ms[0]] + rs[:k] + [ms[1]] + rs[k:])
        else:
            while ms or rs:
                if ms:
                    e(ms.pop(0))
                if rs:
                    e(rs.pop(0))
        if fill and i in fill:
            e.many(fill[i])
        if bar_after and i in bar_after:
            e("s_barrier")


def tr_reads(ta, s, ks, base):
    return [("ds_read_b64_tr_b16", 2 * u, 2, ta + s, base + ks * 8192 + u * 4096) for u in range(2)]


def emit_ta(e, ta, t0, t1, base):
    e("v_lshrrev_b32 %s, 2, v0" % vr(t0))
    e("v_and_b32 %s, 7, %s" % (vr(t1), vr(t0)))
    e("v_lshlrev_b32 %s, 8, %s" % (vr(t0), vr(t0)))
    e("v_lshl_add_u32 %s, %s, 5, %s" % (vr(t0), vr(t1), vr(t0)))
    e("v_and_b32 %s, 3, v0" % vr(t1))
    e("v_lshl_add_u32 %s, %s, 3, %s" % (vr(t0), vr(t1), vr(t0)))
    if base:
        e("v_add_u32 %s, 0x%x, %s" % (vr(t0), base, vr(t0)))
    for s in range(8):
        e("v_xor_b32 %s, 0x%x, %s" % (vr(ta + s), s << 5, vr(t0)))


_uid = [0]


def stamp(e, cfg, cond=None):
    if not cfg.get("stamps") or cfg.get("_nt") != 1:
        return
    if cond is not None:
        _uid[0] += 1
        e("s_cmp_lg_u32 %s, %d" % (sr(S_ITEM), cond))
        e("s_cbranch_scc1 L_ns%d" % _uid[0])
        stamp(e, cfg)
        e.label("L_ns%d" % _uid[0])
        return
    e("s_memtime %s" % sr(S_SA, 2))
    e("s_memrealtime %s" % sr(S_SA + 2, 2))
    e("s_mov_b32 m0, %s" % sr(S_SI))
    e("s_waitcnt lgkmcnt(0)")
    e("v_writelane_b32 v6, %s, m0" % sr(S_SA))
    e("v_writelane_b32 v7, %s, m0" % sr(S_SA + 2))
    e("s_add_u32 %s, %s, 1" % (sr(S_SI), sr(S_SI)))


DIAG = [False]


def emit_srd(e, names):
    t = sr(S_T0)
    sel = {"X": (S_X, 4, 14), "K": (S_K, 6, 16), "V": (S_V, 8, 18), "WQ": (S_WQ, 10, 20), "WO": (S_WO, 12, 22)}

    def fin(srd, lo, size):
        e("s_add_u32 s%d, s%d, %s" % (srd, lo, t))
        e("s_addc_u32 s%d, s%d, 0" % (srd + 1, lo + 1))
        if size is not None:
            e("s_mov_b32 s%d, %d" % (srd + 2, size))
        e("s_mov_b32 s%d, 0x20000" % (srd + 3))

    e("s_cmp_lg_u32 %s, 0" % sr(S_BR))
    for nm in names:
        if nm in sel:
            srd, a, b = sel[nm]
            e("s_cselect_b32 s%d, s%d, s%d" % (srd, b, a))
            e("s_cselect_b32 s%d, s%d, s%d" % (srd + 1, b + 1, a + 1))
    for nm in names:
        if nm == "X":
            e("s_mul_i32 %s, %s, 114688" % (t, sr(S_B)))
            fin(S_X, S_X, 114688)
        elif nm in ("K", "V"):
            e("s_lshl_b32 %s, %s, 3" % (t, sr(S_B)))
            e("s_add_u32 %s, %s, %s" % (t, t, sr(S_HG)))
            e("s_lshl_b32 %s, %s, 19" % (t, t))
            fin(sel[nm][0], sel[nm][0], 524288)
        elif nm == "WQ":
            e("s_lshl_b32 %s, %s, 10" % (t, sr(S_HG)))
            e("s_sub_u32 s%d, 0x400000, %s" % (S_WQ + 2, t))
            fin(S_WQ, S_WQ, None)
        elif nm == "WO":
            e("s_lshl_b32 %s, %s, 19" % (t, sr(S_HG)))
            fin(S_WO, S_WO, 524288)
        elif nm == "P":
            e("s_lshl_b32 %s, %s, 20" % (t, sr(S_G)))
            fin(S_P, 24, 0x100000)
        elif nm == "FL":
            e("s_lshl_b32 %s, %s, 10" % (t, sr(S_G)))
            e("s_add_u32 %s, %s, %d" % (t, t, FLAG_OFF))
            fin(S_FL, 24, 1024)
        elif nm == "DBG":
            e("s_lshl_b32 %s, %s, 2" % (t, sr(S_G)))
            if DIAG[0]:
                e("s_add_u32 %s, %s, 128" % (t, t))
            fin(S_DBG, 34, 4)
        elif nm == "OUT":
            e("s_mul_i32 %s, %s, %d" % (t, sr(S_B), 112 * 2048))
            fin(S_OUT, 32, 112 * 2048)


def emit_voff(e, vk, vv, vwq, vx, vwo, t, kvsh=12):
    r4, c16, ce, co, a, b = [vr(t + i) for i in range(6)]
    e("v_lshrrev_b32 %s, 4, v0" % r4)
    e("v_and_b32 %s, 15, v0" % c16)
    e("v_lshlrev_b32 %s, 1, %s" % (ce, r4))
    e("v_xor_b32 %s, %s, %s" % (ce, ce, c16))
    e("v_xor_b32 %s, 8, %s" % (co, ce))
    if vx is not None:
        e("s_lshl_b32 %s, %s, 15" % (sr(S_T0), sr(S_W)))
        e("v_lshl_add_u32 %s, %s, 10, %s" % (a, r4, sr(S_T0)))
        for j in range(4):
            e("v_add_u32 %s, %d, %s" % (b, 4 * j, r4))
            e("v_xor_b32 %s, %s, %s" % (b, b, c16))
            e("v_lshl_add_u32 %s, %s, 4, %s" % (vr(vx + j), b, a))
            if j:
                e("v_add_u32 %s, %d, %s" % (vr(vx + j), j * 3072, vr(vx + j)))
            e("v_add_u32 %s, 16384, %s" % (vr(vx + 4 + j), vr(vx + j)))
    if vwq is not None:
        e("s_lshl_b32 %s, %s, 17" % (sr(S_T0), sr(S_W)))
        e("v_lshl_add_u32 %s, %s, 13, %s" % (a, r4, sr(S_T0)))
        for j in range(4):
            e("v_lshl_add_u32 %s, %s, 4, %s" % (vr(vwq + j), ce if j % 2 == 0 else co, a))
            if j:
                e("v_add_u32 %s, %d, %s" % (vr(vwq + j), j * (4 * 8192 - 1024), vr(vwq + j)))
    if vk is not None:
        e("s_lshl_b32 %s, %s, %d" % (sr(S_T0), sr(S_W), kvsh))
        e("v_lshl_add_u32 %s, %s, 8, %s" % (a, r4, sr(S_T0)))
        for j in range(4):
            e("v_add_u32 %s, %d, %s" % (b, 4 * j, r4))
            e("v_xor_b32 %s, %s, %s" % (b, b, c16))
            e("v_lshl_add_u32 %s, %s, 4, %s" % (vr(vk + j), b, a))
        e("v_lshl_add_u32 %s, %s, 4, %s" % (vr(vv), ce, a))
        e("v_lshl_add_u32 %s, %s, 4, %s" % (vr(vv + 1), co, a))
    if vwo is not None:
        e("s_lshl_b32 %s, %s, 14" % (sr(S_T0), sr(S_W)))
        e("v_lshl_add_u32 %s, %s, 10, %s" % (a, r4, sr(S_T0)))
        for j, c in enumerate((ce, co)):
            e("v_lshrrev_b32 %s, 3, %s" % (b, c))
            e("v_lshl_add_u32 %s, %s, 16, %s" % (vr(vwo + j), b, a))
            e("v_and_b32 %s, 7, %s" % (b, c))
            e("v_lshl_add_u32 %s, %s, 4, %s" % (vr(vwo + j), b, vr(vwo + j)))
        e("v_add_u32 %s, %d, %s" % (vr(vwo + 1), 3072, vr(vwo + 1)))
        e("v_add_u32 %s, %d, %s" % (vr(vwo + 2), 6144, vr(vwo)))
        e("v_add_u32 %s, %d, %s" % (vr(vwo + 3), 6144, vr(vwo + 1)))


def dma(voff, srd, soff, imm, pol):
    return "buffer_load_dwordx4 %s, %s, %s offen offset:%d %s lds" % (vr(voff), sr(srd, 4), soff, imm, pol)


class Loads:
    def __init__(self):
        self.need = []

    def add(self, need):
        self.need.append(need)
        return len(self.need) - 1

    def younger(self, idx):
        return len(self.need) - 1 - idx

    def wait_for(self, bar):
        last = max([i for i, n in enumerate(self.need) if n <= bar], default=-1)
        return len(self.need) - 1 - last


A_OS0, A_OS1, A_Q, A_S, A_O = 64, 96, 128, 160, 192
A_F = 32
A_KA, A_TA, A_NEGM, A_ONES = 8, 12, 20, 28
A_L, A_QA, A_FA, A_T0 = 2, 4, 5, 1
A_TB, A_PA, A_PP = 20, 2, 3
A_STG = [8, 28]
AP_VX, AP_VWQ, AP_VK, AP_VV, AP_T = 64, 72, 76, 80, 84

B_X, B_ACC, B_F = 128, 64, 32
B_VK, B_VV, B_VWQ, B_VWO, B_TA, B_XA, B_QA = 4, 8, 10, 14, 18, 26, 27
B_T0, B_T1, B_T2, B_T3 = 28, 29, 30, 31


def gen_entry(e, cfg):
    stamps = cfg.get("stamps", False)
    kvpol, wpol, xpol = cfg.get("kvpol", "nt"), cfg.get("wpol", ""), cfg.get("xpol", "")
    K = NAME + "_kernel"
    e.raw(".globl %s" % K)
    e.raw(".p2align 8")
    e.raw(".type %s,@function" % K)
    e.label(K)
    e("s_cmp_ge_u32 s2, 256")
    e("s_cbranch_scc1 L_end")
    if stamps:
        e("s_memrealtime %s" % sr(S_ST, 2))
    if cfg.get("badmap"):
        e("s_lshr_b32 s3, s2, 5")
        e("s_and_b32 s2, s2, 31")
        e("s_lshl_b32 s2, s2, 3")
        e("s_or_b32 s2, s2, s3")
    e("s_load_dwordx16 s[4:19], s[0:1], 0")
    e("s_load_dwordx4 s[20:23], s[0:1], 64")
    e("s_load_dwordx2 s[24:25], s[0:1], 96")
    e("s_load_dwordx4 s[32:35], s[0:1], 80")
    e("v_lshrrev_b32 v1, 6, v0")
    e("v_and_b32 v0, 63, v0")
    e("v_readfirstlane_b32 s29, v1")
    e("s_lshr_b32 %s, s2, 4" % sr(S_B))
    e("s_bfe_u32 %s, s2, 0x10002" % sr(S_BR))
    e("s_cmp_eq_u32 s29, 7")
    e("s_cbranch_scc1 L_codepf")
    e("v_lshrrev_b32 v2, 4, v0")
    e("v_and_b32 v3, 15, v0")
    e("v_xor_b32 v3, v3, v2")
    e("v_lshl_add_u32 v1, v1, 4, v2")
    e("v_lshlrev_b32 v1, 10, v1")
    e("v_lshl_add_u32 v8, v3, 4, v1")
    for j in range(1, 4):
        e("v_xor_b32 v%d, %d, v8" % (8 + j, j << 6))
        e("v_add_u32 v%d, %d, v%d" % (8 + j, j * 3072, 8 + j))
    e("s_lshl_b32 s26, s29, 12")
    e("s_add_u32 m0, s26, %d" % XREG[0])
    e("s_waitcnt lgkmcnt(0)")
    emit_srd(e, ["X"])
    for j in range(4):
        e(dma(8 + j, S_X, "0", j * 1024, xpol))
    e.label("L_ids")
    e("s_and_b32 s26, s2, 3")
    e("s_lshl_b32 s26, s26, 1")
    e("s_bfe_u32 s27, s2, 0x10003")
    e("s_or_b32 %s, s26, s27" % sr(S_HG))
    e("s_lshl_b32 %s, %s, 4" % (sr(S_G), sr(S_BR)))
    e("s_add_u32 %s, %s, %s" % (sr(S_G), sr(S_G), sr(S_B)))
    e("s_and_b32 %s, s29, 3" % sr(S_W))
    e("s_lshl_b32 %s, %s, 12" % (sr(S_M0KV), sr(S_W)))
    e("s_lshl_b32 %s, %s, 13" % (sr(S_M0X), sr(S_W)))
    def hashbits(dst, shifts, mask):
        e("s_lshr_b32 %s, s2, %d" % (dst, shifts[0]))
        for x in shifts[1:]:
            e("s_lshr_b32 s28, s2, %d" % x)
            e("s_xor_b32 %s, %s, s28" % (dst, dst))
        e("s_and_b32 %s, %s, %d" % (dst, dst, mask))

    kx, hx = cfg.get("kvrot", (2, 5)), cfg.get("hrot", (1,))
    if kx is None:
        e("s_mov_b32 s3, 0")
    else:
        hashbits("s3", kx, 7)
        e("s_lshl_b32 s3, s3, 14")
    if hx is None:
        e("s_mov_b32 %s, 0" % sr(S_ROT))
    else:
        hashbits(sr(S_ROT), hx, 3)
        e("s_lshl_b32 s28, %s, 17" % sr(S_ROT))
        e("s_or_b32 s3, s3, s28")
        e("s_lshl_b32 %s, %s, 8" % (sr(S_ROT), sr(S_ROT)))
    e("s_mov_b32 %s, %s" % (sr(S_WOFF), sr(S_ROT)))
    e("s_cmp_eq_u32 s29, 7")
    e("s_cbranch_scc1 L_B1")
    e("s_cmp_ge_u32 s29, 4")
    e("s_cbranch_scc1 L_B2")
    emit_voff(e, None, None, AP_VWQ, None, None, AP_T)
    emit_srd(e, ["WQ"])
    for st in range(2):
        e("s_add_u32 m0, %s, %d" % (sr(S_M0KV), L_W + st * 16384))
        e("s_nop 0")
        for j in range(4):
            e(dma(AP_VWQ + j, S_WQ, sr(S_WOFF), j * 1024, wpol))
        e.many(w_advance(st))
    e("s_cmp_eq_u32 s29, 3")
    e("s_cbranch_scc1 L_P1")
    e("s_branch L_P2")
    e.label("L_codepf")
    e("s_getpc_b64 s[30:31]")
    e.label("L_code_ref")
    e("s_sub_u32 s30, s30, L_code_ref-%s_kernel" % NAME)
    e("s_subb_u32 s31, s31, 0")
    e("s_lshr_b32 s26, s2, 3")
    e("s_mul_i32 s26, s26, 22")
    e("v_and_b32 v1, 31, v0")
    e("v_add_u32 v1, s26, v1")
    e("v_lshlrev_b32 v1, 7, v1")
    e("v_min_u32 v1, L_end-%s_kernel, v1" % NAME)
    e("global_load_dword %s, v1, s[30:31]" % vr(B_X + 64))
    e("s_waitcnt lgkmcnt(0)")
    emit_srd(e, ["X"])
    e("s_branch L_ids")


def gen_pro(e, cfg, nt):
    stamps = cfg.get("stamps", False)
    kvpol, wpol, xpol = cfg.get("kvpol", "nt"), cfg.get("wpol", ""), cfg.get("xpol", "")
    e.label("L_P%d" % nt)
    cfg["_nt"] = nt
    emit_voff(e, None, None, None, AP_VX, None, AP_T)
    ld = Loads()
    ld.need = [0] * 8 + [1] * 4

    stage = [0]

    def pdma(x):
        pc = cfg.get("pcap", [None, None, None, 7, 7, 7, 7, 7, 7])
        if isinstance(pc, (list, tuple)):
            pc = pc[stage[0]]
        if pc is not None:
            e("s_waitcnt vmcnt(%d)" % pc)
        e(x)

    def xh(jx, half):
        if half >= nt:
            return
        e("s_add_u32 m0, %s, %d" % (sr(S_M0X), XREG[jx] + half * 4096))
        e("s_mov_b32 %s, %d" % (sr(S_T1), jx * 256))
        for j in range(4):
            pdma(dma(AP_VX + 4 * half + j, S_X, sr(S_T1), j * 1024, xpol))
            ld.add(2 * jx)

    def wt(st, need):
        e("s_add_u32 m0, %s, %d" % (sr(S_M0KV), L_W + (st & 3) * 16384))
        e("s_nop 0")
        for j in range(4):
            pdma(dma(AP_VWQ + j, S_WQ, sr(S_WOFF), j * 1024, wpol))
            ld.add(need)
        e.many(w_advance(st))

    def kv(p):
        e("s_add_u32 m0, %s, %d" % (sr(S_M0KV), p * 16384))
        e("s_nop 0")
        for j in range(4):
            pdma(dma(AP_VV + (j & 1) if p else AP_VK + j, S_V if p else S_K, "s3", j * 1024, kvpol))
            ld.add(8)

    def c(st):
        stage[0] = st + 1
        e("s_waitcnt vmcnt(%d)" % ld.wait_for(st))
        e("s_barrier")
        if stamps == 4:
            stamp(e, cfg)

    xh(1, 0)
    emit_srd(e, ["K", "V", "WO", "P", "FL", "DBG"])
    if stamps:
        e("s_mov_b32 %s, 0" % sr(S_SI))
        e("v_mov_b32 v6, 0")
        e("v_mov_b32 v7, 0")
        stamp(e, cfg)
    c(0)
    xh(1, 1); wt(2, 2)
    c(1)
    wt(3, 3); xh(2, 0)
    emit_voff(e, AP_VK, AP_VV, None, None, None, AP_T, cfg.get("kvsh", 12))
    c(2)
    xh(2, 1); wt(4, 4)
    e("v_and_b32 v1, 15, v0")
    e("v_lshrrev_b32 v2, 4, v0")
    e("v_xor_b32 v2, v2, v1")
    e("v_lshlrev_b32 v2, 4, v2")
    e("v_lshl_add_u32 v1, v1, 8, v2")
    for ks in range(4):
        e("v_xor_b32 %s, 0x%x, v1" % (vr(A_KA + ks), ks << 6))
    c(3)
    wt(5, 5); xh(3, 0)
    emit_ta(e, A_TA, 1, 2, 0)
    c(4)
    xh(3, 1); wt(6, 6)
    e("s_add_u32 %s, %s, %d" % (sr(S_T0), sr(S_M0X), L_Q))
    e("v_lshl_add_u32 %s, v0, 4, %s" % (vr(A_QA), sr(S_T0)))
    for j in range(4):
        e("v_mov_b32 %s, 0x3f803f80" % vr(A_ONES + j))
    e("s_mov_b32 %s, 0x46800000" % sr(S_BOUND))
    e("s_mov_b32 %s, 0" % sr(S_ITEM))
    def clear_flag():
        e("s_lshl_b32 %s, %s, 7" % (sr(S_T0), sr(S_HG)))
        e("v_lshrrev_b32 v1, 5, v0")
        e("v_lshlrev_b32 v1, 24, v1")
        e("v_lshl_add_u32 v1, v0, 2, v1")
        e("v_add_u32 %s, %s, v1" % (vr(A_FA), sr(S_T0)))
        e("v_mov_b32 v1, 0")
        e("buffer_store_dword v1, %s, %s, 0 offen sc1" % (vr(A_FA), sr(S_FL, 4)))
        ld.add(8)

    c(5)
    wt(7, 7); kv(0)
    c(6)
    wt(0, 8)
    c(7)
    kv(1)
    if not cfg.get("d_nolast"):
        e("s_waitcnt vmcnt(4)")
    if nt == 1:
        clear_flag()
    if nt == 1:
        e("v_lshlrev_b32 %s, 24, v0" % vr(A_OS0 + 26))
        e("v_mov_b32 %s, 1" % vr(A_OS0 + 27))
        e("s_and_b32 %s, %s, 7" % (sr(S_T5), sr(S_B)))
        if cfg.get("atom", 1) == 0:
            e("buffer_atomic_add %s, %s, %s, 0 offen sc1" % (vr(A_OS0 + 27), vr(A_OS0 + 26), sr(S_DBG, 4)))
    if cfg.get("aprio", 0):
        e("s_setprio %d" % cfg["aprio"])


def kvoff(gs, cfg):
    sh = cfg.get("kvsh", 12) - 12
    t = gs & 7
    lo = t & ((1 << sh) - 1)
    return (gs >> 3) * 131072 + (lo << 12) + ((t >> sh) << (14 + sh))


def w_advance(t):
    t += 1
    return ["s_xor_b32 %s, %s, %d" % (sr(S_WOFF), sr(S_ROT), (t & 7) * 524288 + (t >> 3 & 3) * 256)]


def a_qk(e, nt, half, first=False, pk=True, scale=True):
    kbase = L_KV + (2 * half) * 16384
    ops = []
    for ks in range(4):
        for sub in range(4):
            c0 = (lambda qt: None) if first else (lambda qt: A_NEGM + 4 * qt)
            ops.append(([("ds_read_b128", 0, 4, A_KA + ks, kbase + sub * 4096)],
                        [(A_S + 16 * qt + 4 * sub, A_Q + 16 * qt + 4 * ks, c0(qt) if ks == 0 else A_S + 16 * qt + 4 * sub)
                         for qt in range(nt)]))
    pre, fill = None, None
    if first:
        pre = {4 * ks: ["ds_read_b128 %s, %s offset:%d" % (vr(A_Q + 16 * qt + 4 * ks, 4), vr(A_QA), (4 * qt + ks) * 1024)
                        for qt in range(nt)] for ks in range(4)}
        fill = {i: ["v_pk_mul_f32 %s, %s, %s op_sel_hi:[0,1]" % (vr(A_O + 32 * qt + 2 * i, 2), vr(A_NEGM + 4 * qt, 2), vr(A_O + 32 * qt + 2 * i, 2))
                    for qt in range(nt)] for i in range(16)}
        if not pk:
            fill = {i: ["v_mul_f32 %s, %s, %s" % (vr(A_O + 32 * qt + 2 * i + j), vr(A_NEGM + 4 * qt), vr(A_O + 32 * qt + 2 * i + j))
                        for qt in range(nt) for j in range(2)] for i in range(16)}
    stream(e, ops, A_F, 8, 7, pre_read=pre, fill=fill if scale else None)


def a_exp(e, nt):
    order = [(qt, j) for blk in range(2) for qt in range(nt) for j in range(8 * blk, 8 * blk + 8)]

    def cvt(q2, j2):
        e("v_cvt_pk_bf16_f32 %s, %s, %s" % (vr(A_S + 16 * q2 + j2 // 2), vr(A_S + 16 * q2 + j2), vr(A_S + 16 * q2 + j2 + 1)))

    for i, (qt, j) in enumerate(order):
        e("v_exp_f32 %s, %s" % (vr(A_S + 16 * qt + j), vr(A_S + 16 * qt + j)))
        if i >= 2 and i % 2 == 0:
            cvt(*order[i - 2])
    e("s_nop 0")
    cvt(*order[-2])
    if nt == 1:
        e("s_nop 0")
    for blk in range(2):
        for qt in range(nt):
            e(mf(A_F + 4 * qt, A_ONES, A_S + 16 * qt + 4 * blk, None if blk == 0 else A_F + 4 * qt))
    e("s_nop 7")


def a_pv(e, nt, half, first=False):
    vbase = L_KV + (2 * half + 1) * 16384
    ops = []
    for ks in range(2):
        for s in range(8):
            ops.append((tr_reads(A_TA, s, ks, vbase),
                        [(A_O + 32 * qt + 4 * s, A_S + 16 * qt + 4 * ks, None if (first and ks == 0) else A_O + 32 * qt + 4 * s)
                         for qt in range(nt)]))
    stream(e, ops, A_F, 8, 7)


def a_rowmax(e, t, u, S, floor):
    e("v_max3_f32 %s, %s, %s, %s" % (vr(t), vr(S), vr(S + 1), vr(S + 2)))
    for j in range(3, 15, 2):
        e("v_max3_f32 %s, %s, %s, %s" % (vr(t), vr(t), vr(S + j), vr(S + j + 1)))
    if floor:
        e("v_max3_f32 %s, %s, %s, 0" % (vr(t), vr(t), vr(S + 15)))
    else:
        e("v_max_f32 %s, %s, %s" % (vr(t), vr(t), vr(S + 15)))
    for sw in ("v_permlane32_swap_b32", "v_permlane16_swap_b32"):
        e("v_mov_b32 %s, %s" % (vr(u), vr(t)))
        e("s_nop 1")
        e("%s %s, %s" % (sw, vr(t), vr(u)))
        e("s_nop 1")
        e("v_max_f32 %s, %s, %s" % (vr(t), vr(t), vr(u)))


def a_step(e, nt, half, cfg):
    P = "L_A%d" % nt
    a_qk(e, nt, half)
    e("s_nop %d" % (1 if nt == 2 else 4))
    e.label("%s_exp%d" % (P, half))
    a_exp(e, nt)
    if nt == 2:
        e("v_max_f32 %s, %s, %s" % (vr(A_T0), vr(A_F), vr(A_F + 4)))
        e("v_cmp_lt_f32 vcc, %s, %s" % (sr(S_BOUND), vr(A_T0)))
    else:
        e("v_cmp_lt_f32 vcc, %s, %s" % (sr(S_BOUND), vr(A_F)))
    e("s_cbranch_vccnz %s_slow%d" % (P, half))
    for qt in range(nt):
        e("v_add_f32 %s, %s, %s" % (vr(A_L + qt), vr(A_L + qt), vr(A_F + 4 * qt)))
    e("s_barrier")
    if cfg.get("stamps") == 5:
        stamp(e, cfg, cfg.get("stitem", 2))
    a_pv(e, nt, half)


def a_slow(e, nt, half):
    P = "L_A%d" % nt
    e.label("%s_slow%d" % (P, half))
    a_qk(e, nt, half)
    e("s_nop 7")
    for qt in range(nt):
        t, u = A_F + 4 * qt, A_F + 4 * qt + 1
        S = A_S + 16 * qt
        a_rowmax(e, t, u, S, True)
        e("v_exp_f32 %s, -%s" % (vr(u), vr(t)))
        for j in range(4):
            e("v_sub_f32 %s, %s, %s" % (vr(A_NEGM + 4 * qt + j), vr(A_NEGM + 4 * qt + j), vr(t)))
        for j in range(16):
            e("v_sub_f32 %s, %s, %s" % (vr(S + j), vr(S + j), vr(t)))
        e("v_mul_f32 %s, %s, %s" % (vr(A_L + qt), vr(u), vr(A_L + qt)))
        for j in range(32):
            e("v_mul_f32 %s, %s, %s" % (vr(A_O + 32 * qt + j), vr(u), vr(A_O + 32 * qt + j)))
    e("s_branch %s_exp%d" % (P, half))


def gen_A(e, cfg, nt):
    P = "L_A%d" % nt
    stpol = cfg.get("stpol", "sc1")
    stamps = cfg.get("stamps", False)
    e.label(P)

    def pack(dst):
        for j in range(16 * nt):
            e("v_cvt_pk_bf16_f32 %s, %s, %s" % (vr(dst + j), vr(A_O + 2 * j), vr(A_O + 2 * j + 1)))

    if cfg.get("peel0", True):
        e("s_barrier")
        stamp(e, cfg)
        a_qk(e, nt, 0, first=True, scale=False)
        e("s_mov_b32 %s, 4" % sr(S_CNT))
        e("s_nop 5")
        e("s_branch %s_go" % P)
    e.label(P + "_item")
    e("s_barrier")
    stamp(e, cfg)
    for qt in range(nt):
        e("v_rcp_f32 %s, %s" % (vr(A_NEGM + 4 * qt), vr(A_L + qt)))
    e("s_cmp_eq_u32 %s, 4" % sr(S_ITEM))
    e("s_cbranch_scc1 %s_tail" % P)
    a_qk(e, nt, 0, first=True, pk=cfg.get("pkA", False))
    e("s_mov_b32 %s, 4" % sr(S_CNT))
    e("s_cmp_eq_u32 %s, 1" % sr(S_ITEM))
    e("s_cbranch_scc1 %s_save0" % P)
    e("s_cmp_eq_u32 %s, 2" % sr(S_ITEM))
    e("s_cbranch_scc1 %s_save1" % P)
    e("s_cmp_eq_u32 %s, 3" % sr(S_ITEM))
    e("s_cbranch_scc1 %s_save2" % P)
    e("s_nop 3")
    e.label(P + "_go")
    chains = []
    for qt in range(nt):
        x = Em()
        t, u = A_NEGM + 4 * qt, A_NEGM + 4 * qt + 2
        a_rowmax(x, t, u, A_S + 16 * qt, False)
        chains.append([l.strip() for l in x.L])
    for k in range(len(chains[0])):
        if chains[0][k].startswith("s_nop"):
            e("s_nop %d" % (2 - nt))
        else:
            e.many([c[k] for c in chains])
    for qt in range(nt):
        t, S = A_NEGM + 4 * qt, A_S + 16 * qt
        if cfg.get("pkS", False):
            for j in range(8):
                e("v_pk_add_f32 %s, %s, %s op_sel_hi:[1,0] neg_lo:[0,1] neg_hi:[0,1]" % (vr(S + 2 * j, 2), vr(S + 2 * j, 2), vr(t, 2)))
        else:
            for j in range(16):
                e("v_sub_f32 %s, %s, %s" % (vr(S + j), vr(S + j), vr(t)))
        for j in (1, 2, 3, 0):
            e("v_sub_f32 %s, 0, %s" % (vr(t + j), vr(t)))
    e("s_waitcnt lgkmcnt(0)")
    a_exp(e, nt)
    for qt in range(nt):
        e("v_mov_b32 %s, %s" % (vr(A_L + qt), vr(A_F + 4 * qt)))
    e("s_waitcnt vmcnt(%d)" % (2 - nt if cfg.get("atom", 1) == 0 else 0))
    e("s_barrier")
    if stamps == 5:
        stamp(e, cfg, cfg.get("stitem", 2))
    a_pv(e, nt, 0, first=True)
    e("s_branch %s_mid" % P)
    e.label(P + "_save0")
    pack(A_OS0)
    e("s_branch %s_go" % P)
    e.label(P + "_save1")
    pack(A_OS1)
    e("s_branch %s_go" % P)
    e.label(P + "_save2")
    pack(A_F)
    for f in range(4 * nt):
        e("ds_write_b128 %s, %s offset:%d" % (vr(A_QA), vr(A_F + 4 * f, 4), f * 1024))
    e("s_branch %s_go" % P)
    e.raw(".p2align 3")
    e.label(P + "_loop")
    e("s_barrier")
    if stamps == 2:
        stamp(e, cfg)
    if stamps == 5:
        stamp(e, cfg, cfg.get("stitem", 2))
    a_step(e, nt, 0, cfg)
    e.label(P + "_mid")
    e("s_barrier")
    if nt == 1 and cfg.get("atom", 1) == 1:
        e("s_sub_u32 %s, %s, 1" % (sr(S_T5), sr(S_T5)))
        e("s_cbranch_scc0 %s_noadd" % P)
        e("buffer_atomic_add %s, %s, %s, 0 offen sc1" % (vr(A_OS0 + 27), vr(A_OS0 + 26), sr(S_DBG, 4)))
        e.label(P + "_noadd")
    if stamps == 5:
        stamp(e, cfg, cfg.get("stitem", 2))
    a_step(e, nt, 1, cfg)
    e("s_sub_u32 %s, %s, 1" % (sr(S_CNT), sr(S_CNT)))
    e("s_cmp_lg_u32 %s, 0" % sr(S_CNT))
    e("s_cbranch_scc1 %s_loop" % P)
    e("s_add_u32 %s, %s, 1" % (sr(S_ITEM), sr(S_ITEM)))
    e("s_branch %s_item" % P)
    a_slow(e, nt, 0)
    a_slow(e, nt, 1)
    e.label(P + "_tail")
    for f in range(4 * nt):
        e("ds_read_b128 %s, %s offset:%d" % (vr(A_Q + 4 * f, 4), vr(A_QA), f * 1024))
    for qt in range(nt):
        for i in range(16):
            if cfg.get("pkT", True):
                e("v_pk_mul_f32 %s, %s, %s op_sel_hi:[0,1]" % (vr(A_O + 32 * qt + 2 * i, 2), vr(A_NEGM + 4 * qt, 2), vr(A_O + 32 * qt + 2 * i, 2)))
            else:
                for j in range(2):
                    e("v_mul_f32 %s, %s, %s" % (vr(A_O + 32 * qt + 2 * i + j), vr(A_NEGM + 4 * qt), vr(A_O + 32 * qt + 2 * i + j)))
    for s in range(8):
        e("v_add_u32 %s, 0x10000, %s" % (vr(A_TB + s), vr(A_TA + s)))
    OH = [A_OS0, A_OS1, A_Q, A_S]
    ops = []
    for t in range(8):
        slot = (4 + t) & 7
        ta = A_TB if slot >= 4 else A_TA
        base = (slot & 3) * 16384
        hf, hh = t >> 2, t & 3
        for kk in range(4):
            for c in range(4):
                d = A_O + 32 * hf + 4 * c
                ops.append((tr_reads(ta, 4 * (kk >> 1) + c, kk & 1, base),
                            [(d + 16 * qt, OH[hh] + 16 * qt + 4 * kk, None if (hh == 0 and kk == 0) else d + 16 * qt) for qt in range(nt)]))
    LA = 7
    e("s_waitcnt lgkmcnt(0)")
    if cfg.get("tailprio", 2):
        e("s_setprio %d" % cfg.get("tailprio", 2))
    for i in range(LA):
        for (mn, sub, nr, addr, off) in ops[i][0]:
            e("%s %s, %s offset:%d" % (mn, vr(A_F + 4 * i + sub, nr), vr(addr), off))
    pack(A_S)
    e("v_lshl_add_u32 %s, v0, 4, %s" % (vr(A_PA), sr(S_M0KV)))
    e("v_mov_b32 %s, 0x80000000" % vr(A_PP))
    e("s_mov_b32 %s, %s" % (sr(S_CH), sr(S_HG)))
    e("s_lshl_b32 %s, %s, 14" % (sr(S_T2), sr(S_HG)))
    e("s_mov_b32 %s, 0" % sr(S_PO))
    e("s_mov_b32 %s, 0" % sr(S_SIG))
    e("s_mov_b32 %s, 4" % sr(S_CNT))
    if stamps == 3:
        stamp(e, cfg)

    def nextchunk():
        return ["s_add_u32 %s, %s, 1" % (sr(S_CH), sr(S_CH)), "s_and_b32 %s, %s, 7" % (sr(S_CH), sr(S_CH)),
                "s_lshl_b32 %s, %s, 17" % (sr(S_PO), sr(S_CH)), "s_add_u32 %s, %s, %s" % (sr(S_PO), sr(S_PO), sr(S_T2))]

    fill, mid = {}, {}
    sig = cfg.get("sigtile", 3)
    for hf, addr, at in ((1, A_PP, 0), (0, A_PA, 64)):
        for k in range(2 * nt):
            stg, src = A_STG[k & 1], A_O + 32 * hf + 8 * k
            c = ["v_cvt_pk_bf16_f32 %s, %s, %s" % (vr(stg + (j ^ (2 * hf))), vr(src + 2 * j), vr(src + 2 * j + 1)) for j in range(4)]
            stx = "buffer_store_dwordx4 %s, %s, %s, %s offen offset:%d %s" % (vr(stg, 4), vr(addr), sr(S_P, 4), sr(S_PO), k * 1024, stpol)
            if cfg.get("epi", 0) == 0:
                p0 = at + 3 + 3 * k
                fill[p0] = c[:2]
                fill[p0 + 1] = c[2:]
                fill[p0 + 2] = [stx]
            elif cfg["epi"] == 1:
                p0 = at + 3 + 4 * k
                for j in range(4):
                    mid[p0 + j] = [c[j]]
                fill[p0 + 3] = [stx]
            elif cfg["epi"] == 2:
                p0 = at + 3 + 3 * k
                for j in range(2):
                    mid[p0 + j] = [c[2 * j]]
                    fill[p0 + j] = [c[2 * j + 1]]
                mid[p0 + 2] = [stx]
        for j, x in enumerate(nextchunk()):
            fill[at + 20 + j] = [x]
        fill[at + 16 * sig - 1] = [] if cfg.get("d_nowait") else ["s_waitcnt vmcnt(0)"]
        if nt == 1:
            fill[at + 16 * sig] = ["v_mov_b32 v1, %s" % sr(S_SIG), "s_add_u32 %s, %s, 1" % (sr(S_SIG), sr(S_SIG)),
                                   "buffer_store_dword v1, %s, %s, 0 offen sc1" % (vr(A_FA), sr(S_FL, 4))]
    fill[26] = ["v_mov_b32 %s, %s" % (vr(A_PP), vr(A_PA))]
    fill[124] = ["s_sub_u32 %s, %s, 1" % (sr(S_CNT), sr(S_CNT))]
    fill[125] = ["s_cmp_lg_u32 %s, 0" % sr(S_CNT)]
    e.raw(".p2align 3")
    e.label(P + "_op")
    stream(e, ops, A_F, 8, LA, pre_issued=LA, next_ops=ops, fill=fill, bar_after=set(range(15, 128, 16)), mid=mid, wevery=cfg.get("opw", 2))
    if stamps == 3:
        stamp(e, cfg)
        e("s_cmp_lg_u32 %s, 0" % sr(S_CNT))
    e("s_cbranch_scc1 %s_op" % P)
    e("s_nop 7")
    for f in range(4 * nt):
        e("ds_write_b128 %s, %s offset:%d" % (vr(A_QA), vr(A_O + 32 + 4 * f, 4), f * 1024))
    e("s_waitcnt lgkmcnt(0)")
    e("s_barrier")
    if stamps:
        stamp(e, cfg)
        e("s_waitcnt vmcnt(0)")
        e("s_barrier")
        stamp(e, cfg)
        e("s_cmp_lg_u32 %s, 3" % sr(S_W))
        e("s_cbranch_scc1 L_end")
        e("s_mov_b32 s%d, s24" % S_WS)
        e("s_mov_b32 s%d, s25" % (S_WS + 1))
        e("s_mov_b32 s%d, %d" % (S_WS + 2, WS_BYTES))
        e("s_mov_b32 s%d, 0x20000" % (S_WS + 3))
        e("s_lshl_b32 %s, s2, 9" % sr(S_T0))
        e("s_add_u32 %s, %s, %d" % (sr(S_T0), sr(S_T0), WS_BYTES - 65536 - 131072))
        e("v_lshl_add_u32 v3, v0, 3, %s" % sr(S_T0))
        e("buffer_store_dwordx2 v[6:7], v3, %s, 0 offen" % sr(S_WS, 4))
        e("s_memrealtime %s" % sr(S_ST + 2, 2))
        e("s_waitcnt lgkmcnt(0)")
        for j in range(4):
            e("v_mov_b32 v%d, s%d" % (8 + j, S_ST + j))
        e("s_lshl_b32 %s, s2, 4" % sr(S_T0))
        e("s_add_u32 %s, %s, %d" % (sr(S_T0), sr(S_T0), WS_BYTES - 65536))
        e("v_mov_b32 v3, %s" % sr(S_T0))
        e("buffer_store_dwordx4 v[8:11], v3, %s, 0 offen" % sr(S_WS, 4))
        if cfg.get("diag"):
            e("s_mov_b32 s12, s34")
            e("s_mov_b32 s13, s35")
            e("s_mov_b32 s14, 64")
            e("s_mov_b32 s15, 0x20000")
            e("v_lshlrev_b32 v12, 24, v0")
            e("v_not_b32 v13, v8")
            e("buffer_atomic_umax v10, v12, s[12:15], 0 offen offset:56 sc1")
            e("buffer_atomic_umax v13, v12, s[12:15], 0 offen offset:60 sc1")
            e("s_cmp_lg_u32 s2, 0")
            e("s_cbranch_scc1 L_end")
            e("s_mov_b32 s14, 56")
            e("v_sub_u32 v14, v7, v8")
            e("v_lshlrev_b32 v12, 2, v0")
            e("buffer_atomic_add v14, v12, s[12:15], 0 offen sc1")
    e("s_endpgm")


def gen_B(e, cfg, nt):
    P = "L_B%d" % nt
    kvpol, wpol, opol = cfg.get("kvpol", "nt"), cfg.get("wpol", ""), cfg.get("opol", "")
    e.label(P)
    if cfg.get("bprio", 0):
        e("s_setprio %d" % cfg["bprio"])
    emit_voff(e, B_VK, B_VV, B_VWQ, None, B_VWO, B_F, cfg.get("kvsh", 12))
    emit_ta(e, B_TA, B_T0, B_T1, L_W)
    e("v_and_b32 v1, 15, v0")
    e("v_lshrrev_b32 v2, 5, v0")
    e("v_bfe_u32 v3, v0, 4, 1")
    e("v_xor_b32 %s, v2, v1" % vr(B_T0))
    e("v_lshlrev_b32 %s, 4, %s" % (vr(B_T0), vr(B_T0)))
    e("v_lshl_add_u32 %s, v1, 8, %s" % (vr(B_T0), vr(B_T0)))
    e("v_lshl_add_u32 %s, v3, 3, %s" % (vr(B_T0), vr(B_T0)))
    e("v_add_u32 %s, %s, %s" % (vr(B_XA), sr(S_M0X), vr(B_T0)))
    e("v_add_u32 %s, 0x%x, %s" % (vr(B_T3), L_Q, vr(B_XA)))
    e("s_add_u32 %s, %s, %d" % (sr(S_T0), sr(S_M0X), L_Q))
    e("v_lshl_add_u32 %s, v2, 8, %s" % (vr(B_QA), sr(S_T0)))
    e("v_lshl_add_u32 %s, v1, 4, %s" % (vr(B_QA), vr(B_QA)))
    e("v_lshl_add_u32 %s, v3, 3, %s" % (vr(B_QA), vr(B_QA)))
    e("s_mov_b32 %s, 0x3e0293ee" % sr(S_SCALE))
    e("s_mov_b32 %s, 0x3e0293ee" % sr(S_SCALE + 1))
    e.many(w_advance(8))
    e("s_and_b32 %s, s3, 0x60000" % sr(S_ITEM))
    e("s_xor_b32 %s, s3, %d" % (sr(S_KVOFF), kvoff(1, cfg)))
    e("s_waitcnt lgkmcnt(0)")
    emit_srd(e, ["K", "V", "WQ", "WO", "P", "FL", "DBG", "OUT"])

    KM = ["s3"] * 4
    for i, sh in enumerate(cfg.get("kvrot2", [])):
        d = "s%d" % (4 + i)
        e("s_lshr_b32 %s, s2, %d" % (d, sh[0]))
        for x in sh[1:]:
            e("s_lshr_b32 s28, s2, %d" % x)
            e("s_xor_b32 %s, %s, s28" % (d, d))
        e("s_and_b32 %s, %s, 7" % (d, d))
        e("s_lshl_b32 %s, %s, 14" % (d, d))
        e("s_or_b32 %s, %s, %s" % (d, d, sr(S_ITEM)))
        KM[1 + i] = d

    H0 = 2

    def wlast(q):
        return wuse(q) if H0 == 4 else 2 * q

    def wuse(q):
        return 2 * q

    def piece(kind, q, j):
        if kind == "kv":
            ins = dma(B_VV + (j & 1), S_V, sr(S_KVOFF), j * 1024, kvpol) if q & 1 else dma(B_VK + j, S_K, sr(S_KVOFF), j * 1024, kvpol)
            post = ["s_xor_b32 %s, %s, %d" % (sr(S_KVOFF), KM[((q + 1) >> 4) & 3], kvoff((q + 1) // 2, cfg))] if (q & 1 and j == 3) else []
            return ((q & 3) * 16384, [], ins, post, q, q - 3)
        if kind == "w":
            return (L_W + (q & 3) * 16384, [], dma(B_VWQ + j, S_WQ, sr(S_WOFF), j * 1024, wpol),
                    w_advance(q + 8) if j == 3 else [], wuse(q), wlast(q - 4) + 1)
        if kind == "wo":
            setup = ["s_add_u32 %s, %s, %d" % (sr(S_T1), sr(S_HG), 1 + (q >> 2)), "s_and_b32 %s, %s, 7" % (sr(S_T1), sr(S_T1)),
                     "s_lshl_b32 %s, %s, 7" % (sr(S_T1), sr(S_T1)), "s_or_b32 %s, %s, %s" % (sr(S_T1), sr(S_T1), sr(S_ITEM)), "s_xor_b32 %s, %s, %d" % (sr(S_T1), sr(S_T1), (q & 3) * 131072)] if j == 0 else []
            return (((4 + q) & 7) * 16384, setup, dma(B_VWO + j, S_WO, sr(S_T1), j * 1024, opol), [], max(64, 63 + q),
                    wlast(20 + q) + 1 if q < 4 else max(57 + q, cfg.get("wostart", 62)))

    seq = []
    for q in range(0, 64):
        seq += [piece("kv", q, j) for j in range(4)]
        if q <= 46:
            seq += [piece("w", (q + 1) // 2, j) for j in ((0, 1) if q & 1 else (2, 3))]
        elif q >= 48:
            seq.append(piece("wo", (q - 48) // 4, (q - 48) % 4))
    kv_end = len(seq)
    pfph = cfg.get("pfphase", 62)
    def pf_piece(x, ph, part=None):
        setup = ["s_xor_b32 %s, %s, %d" % (sr(S_T2), sr(S_B), x), "s_lshl_b32 %s, %s, 15" % (sr(S_T2), sr(S_T2)),
                 "s_add_u32 %s, %s, %s" % (sr(S_T2), sr(S_T2), sr(S_M0X)), "v_lshlrev_b32 v1, 7, v0"]
        if part is not None:
            setup += ["v_lshrrev_b32 v3, 4, v0", "v_xor_b32 v3, %d, v3" % part, "v_lshl_add_u32 v1, v3, 24, v1"]
        return (None, setup, "buffer_load_dword v2, v1, %s, %s offen" % (sr(S_WO, 4), sr(S_T2)), [], 1000, ph)

    pfs = [pf_piece(x, pfph) for x in cfg.get("pfx", [0])]
    for part, q in enumerate(cfg.get("pfq", [])):
        at = max(i for i, x in enumerate(seq) if x[4] == q and x[5] == q - 3) + 1
        seq.insert(at, pf_piece(0, q - 3, part))
    kv_end = len(seq)
    for t in range(4, 32):
        x = [piece("wo", t, j) for j in range(4)]
        if pfs and x[0][5] > pfph:
            seq += pfs
            pfs = None
        seq += x
    ld = Loads()
    state = {"pos": 10, "m0": None}

    def take(n, p, cap, lo=None):
        groups = []
        for k in range(n):
            m0, setup, ins, post, need, earliest = seq[state["pos"]]
            assert earliest <= p, (p, state["pos"], earliest)
            g = list(setup)
            if m0 is not None and m0 != state["m0"]:
                g.append("s_add_u32 m0, %s, %d" % (sr(S_M0KV), m0))
                state["m0"] = m0
                if cap is None:
                    g.append("s_nop 0")
            if lo is not None:
                c = lo[state["pos"] % len(lo)] if isinstance(lo, (list, tuple)) else lo
                g += ["s_cbranch_vccz %s_c%d" % (P, state["pos"]), "s_waitcnt vmcnt(%d)" % c, "%s_c%d:" % (P, state["pos"])]
            if cap is not None:
                c = cap[state["pos"] % len(cap)] if isinstance(cap, (list, tuple)) else cap
                g.append("s_waitcnt vmcnt(%d)" % c)
            g.append(ins)
            g += post
            ld.add(need)
            state["pos"] += 1
            groups.append(g)
        return groups

    def bar(p):
        assert all(x[4] > p for x in seq[state["pos"]:state["pos"] + 40]), p
        e("s_waitcnt vmcnt(%d)" % min(ld.wait_for(p), 63))
        e("s_barrier")

    def qp_ops(st):
        ops = []
        for ks in range(2):
            for s in range(8):
                ops.append((tr_reads(B_TA, s, ks, (st & 3) * 16384),
                            [(B_ACC + 32 * qt + 4 * s, B_X + 64 * qt + 4 * (2 * st + ks),
                              None if (st == 0 and ks == 0) else B_ACC + 32 * qt + 4 * s) for qt in range(nt)]))
        return ops

    def qp_halves(h0, h1, groups, upfront):
        for g in groups[:upfront]:
            e.many(g)
        groups = groups[upfront:]
        ops = [o for h in range(h0, h1) for o in qp_ops(h >> 1)[8 * (h & 1):8 * (h & 1) + 8]]
        fill = {}
        for g, lst in enumerate(groups):
            fill.setdefault((g + 1) * len(ops) // len(groups) - 1, []).extend(lst)
        stream(e, ops, B_F, 8, 7, fill=fill)

    def q_write(groups, lo=0, hi=8, pk=False):
        ks = [8 * qt + s for s in range(lo, hi) for qt in range(nt)]
        at = {}
        for g, lst in enumerate(groups):
            if cfg.get("qpos", 3) == 0 or pk:
                at.setdefault(g * len(ks) // len(groups), []).extend(lst)
            elif cfg.get("qpos", 3) == 1:
                at.setdefault((g + 1) * len(ks) // len(groups), []).extend(lst)
            else:
                at.setdefault(min(len(ks), g * len(ks) // (len(groups) - cfg.get("qpos", 3) + 1)), []).extend(lst)
        def mul(k):
            a = B_ACC + 4 * k
            if cfg.get("pkB", False) or (pk and cfg.get("pkP", True)):
                return ["v_pk_mul_f32 %s, %s, %s" % (vr(a + 2 * j, 2), sr(S_SCALE, 2), vr(a + 2 * j, 2)) for j in range(2)]
            return ["v_mul_f32 %s, %s, %s" % (vr(a + j), sr(S_SCALE), vr(a + j)) for j in range(4)]

        def cvt(k):
            a, d = B_ACC + 4 * k, B_F + 2 * k
            return ["v_cvt_pk_bf16_f32 %s, %s, %s" % (vr(d + j), vr(a + 2 * j), vr(a + 2 * j + 1)) for j in range(2)]

        def wr(k):
            return ["ds_write_b64 %s, %s offset:%d" % (vr(B_QA), vr(B_F + 2 * k, 2), k * 512)]

        if cfg.get("qprio", 1) and not pk:
            e("s_setprio %d" % cfg.get("qprio", 1))
        lag = cfg.get("qlag", 0)
        for i in range(len(ks) + 2 * lag):
            e.many(at.get(i, []))
            if i < len(ks):
                e.many(mul(ks[i]))
            if lag <= i < len(ks) + lag:
                e.many(cvt(ks[i - lag]))
            if i >= 2 * lag:
                e.many(wr(ks[i - 2 * lag]))
        e.many(at.get(len(ks) + 2 * lag, []))
        if cfg.get("qprio", 1) and not pk:
            e("s_setprio 0")
        if hi == 8:
            e("s_waitcnt lgkmcnt(0)")

    QS = cfg.get("qsplit", {4: (0, 2, 6, 8), 3: (0, 0, 3, 8), 2: (0, 0, 0, 8)}[H0])

    carry = {}

    def phase_work(p, g):
        e.many(carry.pop(p, []))
        if p % 2 == 0:
            n1, n2 = cfg.get("split", (9, 13)) if p < 14 else cfg.get("split7", (12, 16))
            if p == 0:
                n1, n2 = cfg.get("split0", (n1, n2))
            ops = qp_ops(p // 2)
            for i in range(7):
                for (mn, sub, nr, addr, off) in ops[i][0]:
                    e("%s %s, %s offset:%d" % (mn, vr(B_F + 4 * i + sub, nr), vr(addr), off))
            u = min(cfg.get("upfront0", 4) if p == 0 else up, len(g) - 1)
            for x in g[:u]:
                e.many(x)
            fill = {}
            for i, lst in enumerate(g[u:]):
                fill.setdefault((i + 1) * n1 // len(g[u:]) - 1, []).extend(lst)
            fill.setdefault(n1 - 1, []).append("@")
            fill.setdefault(n2 - 1, []).append("@")
            x = Em()
            stream(x, ops, B_F, 8, 7, pre_issued=7, fill=fill)
            parts = [[]]
            for l in x.L:
                if l.strip() == "@":
                    parts.append([])
                else:
                    parts[-1].append(l.strip())
            e.many(parts[0])
            e("s_waitcnt lgkmcnt(0)")
            for k in (1, 2):
                assert not any(l.startswith("ds_") for l in parts[k])
                carry[p + k] = [l for l in parts[k] if not l.startswith("s_waitcnt")]
            assert p < 14 or not carry.pop(16)
        elif p == 15:
            q_write(g)
        else:
            for x in g:
                e.many(x)

    ops, pre = [], {}
    for st in range(8):
        ops += qp_ops(st)
        pre[16 * st] = ["s_waitcnt vmcnt(0)", "s_barrier"] if (st == 0 and nt == 2) else ["s_barrier"]
        if st % 2 == 0:
            jx = st // 2
            big = XREG[jx] >= 65536
            for kk in range(4):
                lst = []
                for u in range(2):
                    t = B_T0 + u
                    lst.append("v_xor_b32 %s, 0x%x, %s" % (vr(t), (4 * kk + 2 * u) << 4, vr(B_T3 if big else B_XA)))
                    for qt in range(nt):
                        lst.append("ds_read_b64 %s, %s offset:%d" % (vr(B_X + 64 * qt + 4 * (4 * jx + kk) + 2 * u, 2), vr(t), (0 if big else XREG[jx]) + qt * 4096))
                pre.setdefault(16 * st + 2 * kk, []).extend(lst)
    NT = cfg.get("ntab", [8, 4, 8, 4, 8, 4, 8, 4, 8, 4, 8, 4, 8, 4, 6, 6])
    assert sum(NT) == 96
    o0 = cfg.get("o0", 2)
    up = cfg.get("upfront", 4)
    if cfg.get("proq", False):
        last = ops[112:]
        ops[112:] = [last[8 * ks + s_] for s_ in range(8) for ks in range(2)]
        fill = {}

        def conv(s_, stg):
            out = []
            for qt in range(nt):
                a, d = B_ACC + 32 * qt + 4 * s_, stg + 2 * qt
                out += ["v_mul_f32 %s, %s, %s" % (vr(a + j), sr(S_SCALE), vr(a + j)) for j in range(4)]
                out += ["v_cvt_pk_bf16_f32 %s, %s, %s" % (vr(a), vr(a), vr(a + 1)), "v_cvt_pk_bf16_f32 %s, %s, %s" % (vr(a + 1), vr(a + 2), vr(a + 3))]
            return out

        nd = 5 if nt == 2 else 4
        lag = 3 if nt == 2 else 6
        for s_ in range(nd):
            c_ = conv(s_, 0)
            h = len(c_) // 2
            fill[112 + 2 * s_ + 1 + lag] = c_[:h]
            fill[112 + 2 * s_ + 2 + lag] = c_[h:]
        stream(e, ops, B_F, 8, 7, pre_read=pre, fill=fill)
        g = take(cfg.get("pre0", 2 + o0), -1, None)
        for s_ in range(8):
            if s_ >= nd:
                e.many(conv(s_, 0))
            for qt in range(nt):
                e("ds_write_b64 %s, %s offset:%d" % (vr(B_QA), vr(B_ACC + 32 * qt + 4 * s_, 2), (8 * qt + s_) * 512))
        for x in g:
            e.many(x)
        e("s_waitcnt lgkmcnt(0)")
    else:
        stream(e, ops, B_F, 8, 7, pre_read=pre)
        e("s_nop 3")
        q_write(take(cfg.get("pre0", 2 + o0), -1, None), pk=True)
    bar(0)
    CAPS = cfg.get("caps", [7] * 8 + [6] * 14)
    acc = [0.0]

    def capof(x):
        if x is None or x == int(x):
            return x
        lo = int(x)
        per = {0.25: [lo, lo, lo, lo + 1], 0.5: [lo, lo + 1], 0.75: [lo, lo + 1, lo + 1, lo + 1]}[x - lo]
        return per

    slow = cfg.get("slowbr")
    if slow:
        e("s_cmp_eq_u32 %s, %d" % (sr(S_BR), slow[0]))
        e("s_cselect_b64 vcc, -1, 0")
    for p in range(0, 44):
        phase_work(p & 15, take((cfg.get("ntab0", NT) if p < 16 else NT)[p & 15] + (2 + o0 - cfg.get("pre0", 2 + o0) if p == 0 else 0), p, capof(CAPS[p // 2]), slow[1] if slow else None))
        bar(p + 1)
    B_Z, B_PA, B_LA, B_OA, B_POLL = B_X, B_X + 1, B_X + 2, B_X + 4, B_X + 6
    B_OWN = B_ACC
    st = {}

    def dbuf(k, f):
        return B_X + 16 + 28 * f + 4 * k

    def poll_ld(k, alt=0):
        if k < 0:
            e("buffer_load_dword %s, %s, %s, 0 offen sc1" % (vr(B_POLL), vr(B_Z), sr(S_DBG, 4)))
        else:
            e("buffer_load_dword %s, %s, %s, %s offen sc1" % (vr(B_POLL + alt), vr(B_Z), sr(S_FL, 4), sr(S_T4 if alt else S_T3)))

    def poll_issue(k, alt=0):
        if nt != 1:
            return
        if k >= 0:
            t = sr(S_T4 if alt else S_T3)
            e("s_sub_u32 %s, %s, %d" % (t, sr(S_HG), 1 + k))
            e("s_and_b32 %s, %s, 7" % (t, t))
            e("s_lshl_b32 %s, %s, 7" % (t, t))
        poll_ld(k, alt)
        st["poll", k] = ld.add(1000)

    def poll_check(k, alt=0, want=None):
        if nt != 1:
            return
        lab = "%s_poll%d_%d" % (P, k + 1, alt)
        if want is None:
            want = 8 if k < 0 else k + 1
        e("s_waitcnt vmcnt(%d)" % ld.younger(st["poll", k]))
        e.label(lab)
        e("v_readfirstlane_b32 %s, %s" % (sr(S_T0), vr(B_POLL + alt)))
        e("s_cmp_ge_u32 %s, %d" % (sr(S_T0), 0 if cfg.get("d_nospin") else want))
        e("s_cbranch_scc1 %s_ok" % lab)
        poll_ld(k, alt)
        e("s_waitcnt vmcnt(0)")
        e("s_sub_u32 %s, %s, 1" % (sr(S_CNT), sr(S_CNT)))
        e("s_cbranch_scc0 %s" % lab)
        e("s_mov_b32 %s, 0" % sr(S_CNT))
        e.label(lab + "_ok")

    def fetch(k):
        e("s_sub_u32 %s, %s, %d" % (sr(S_T2), sr(S_HG), 1 + k))
        e("s_and_b32 %s, %s, 7" % (sr(S_T2), sr(S_T2)))
        e("s_lshl_b32 %s, %s, 14" % (sr(S_T2), sr(S_T2)))
        e("s_add_u32 %s, %s, %s" % (sr(S_T2), sr(S_T2), sr(S_PO)))
        for f in range(2 * nt):
            e("buffer_load_dwordx4 %s, %s, %s, %s offen offset:%d sc1" % (vr(dbuf(k, f), 4), vr(B_PA), sr(S_P, 4), sr(S_T2), f * 1024))
            st["data", k] = ld.add(1000)

    B_SEL = B_X + 8

    def accumulate(j):
        for f in range(2 * nt):
            d = B_ACC + 8 * f + 4 * ((j + 1) & 1)
            if j == -1:
                e(mf(d, B_SEL + 4, dbuf(0, f), None))
            elif j == 6:
                e(mf(d, B_SEL, dbuf(6, f), d))
            else:
                e(mf(d, B_SEL + 2, dbuf(j, f) + 2, None if j == 0 else d))

    def arrived(k):
        e("s_waitcnt vmcnt(%d)" % min(62, ld.younger(st["data", k])))

    N3 = cfg.get("ntab3", [6, 4, 6, 4, 8, 3, 5, 4, 5, 4, 5, 4, 5, 4, 6, 4, 6])
    cap3 = cfg.get("cap3", 6)
    pi, pc = cfg.get("pollsched", (73, 76))
    sent = cfg.get("sent", False)
    sw = cfg.get("sentwant", 4)
    lastc = 94 if sent else cfg.get("lastc", 95)
    for p in range(44, 96):
        if p == 48:
            if cfg.get("poll1", True):
                e("v_lshlrev_b32 %s, 24, v0" % vr(B_Z))
            else:
                e("v_mov_b32 %s, 0" % vr(B_Z))
            e("s_mov_b32 %s, 0x40000" % sr(S_CNT))
            e("v_lshl_add_u32 %s, v0, 4, %s" % (vr(B_PA), sr(S_M0KV)))
            e("s_add_u32 %s, %s, %d" % (sr(S_T0), sr(S_M0X), L_Q))
            e("v_lshl_add_u32 %s, v0, 4, %s" % (vr(B_LA), sr(S_T0)))
            e("s_lshl_b32 %s, %s, 17" % (sr(S_PO), sr(S_HG)))
            e("s_lshl_b32 %s, %s, 16" % (sr(S_T0), sr(S_W)))
            e("s_lshl_b32 %s, %s, 10" % (sr(S_T2), sr(S_BR)))
            e("s_add_u32 %s, %s, %s" % (sr(S_T0), sr(S_T0), sr(S_T2)))
            e("s_lshl_b32 %s, %s, 7" % (sr(S_T2), sr(S_HG)))
            e("s_add_u32 %s, %s, %s" % (sr(S_T0), sr(S_T0), sr(S_T2)))
            if cfg.get("trout", True):
                e("v_lshrrev_b32 v1, 3, v0")
                e("v_and_b32 v2, 7, v0")
                e("v_lshl_add_u32 %s, v1, 11, %s" % (vr(B_OA), sr(S_T0)))
                e("v_lshl_add_u32 %s, v2, 4, %s" % (vr(B_OA), vr(B_OA)))
                e("s_add_u32 %s, %s, %d" % (sr(S_T0), sr(S_M0X), L_Q))
                e("v_xor_b32 v3, v1, v2")
                e("v_lshl_add_u32 %s, v1, 7, %s" % (vr(B_OA + 1), sr(S_T0)))
                e("v_lshl_add_u32 %s, v3, 4, %s" % (vr(B_OA + 1), vr(B_OA + 1)))
                e("v_and_b32 v1, 15, v0")
                e("v_lshl_add_u32 %s, v1, 7, %s" % (vr(B_VWQ), sr(S_T0)))
                e("v_lshrrev_b32 v3, 5, v0")
                e("v_xor_b32 v3, v3, v2")
                e("v_lshl_add_u32 %s, v3, 4, %s" % (vr(B_VWQ), vr(B_VWQ)))
                e("v_bfe_u32 v1, v0, 4, 1")
                e("v_lshl_add_u32 %s, v1, 3, %s" % (vr(B_VWQ), vr(B_VWQ)))
                for c_ in range(1, 4):
                    e("v_xor_b32 %s, %d, %s" % (vr(B_VWQ + c_), c_ << 5, vr(B_VWQ)))
                for i in range(1, 4):
                    e("s_mov_b32 s%d, %d" % (S_X + i, i * 16384))
            else:
                e("v_and_b32 v1, 15, v0")
                e("v_lshl_add_u32 %s, v1, 11, %s" % (vr(B_OA), sr(S_T0)))
                e("v_lshrrev_b32 v1, 5, v0")
                e("v_lshl_add_u32 %s, v1, 4, %s" % (vr(B_OA), vr(B_OA)))
                e("v_bfe_u32 v1, v0, 4, 1")
                e("v_lshl_add_u32 %s, v1, 5, %s" % (vr(B_OA), vr(B_OA)))
                e("v_add_u32 %s, 0x8000, %s" % (vr(B_OA + 1), vr(B_OA)))
            e("v_bfe_u32 v1, v0, 2, 2")
            e("v_lshrrev_b32 v2, 4, v0")
            e("v_and_b32 v3, 1, v0")
            e("v_lshlrev_b32 v3, 4, v3")
            e("v_mov_b32 %s, 0x3f80" % vr(B_T0))
            e("v_lshlrev_b32 v3, v3, %s" % vr(B_T0))
            e("v_cmp_eq_u32 vcc, v1, v2")
            e("v_bfe_u32 v1, v0, 1, 1")
            e("v_mov_b32 %s, 0" % vr(B_SEL))
            e("v_cndmask_b32 v3, 0, v3, vcc")
            e("v_cmp_eq_u32 vcc, 0, v1")
            e("v_mov_b32 %s, 0" % vr(B_SEL + 1))
            e("v_mov_b32 %s, 0" % vr(B_SEL + 6))
            e("v_cndmask_b32 %s, 0, v3, vcc" % vr(B_SEL + 2))
            e("v_mov_b32 %s, 0" % vr(B_SEL + 7))
            e("v_sub_u32 %s, v3, %s" % (vr(B_SEL + 3), vr(B_SEL + 2)))
            e("v_mov_b32 %s, %s" % (vr(B_SEL + 4), vr(B_SEL + 2)))
            e("v_mov_b32 %s, %s" % (vr(B_SEL + 5), vr(B_SEL + 3)))
            for j in range(4):
                e("v_mov_b32 %s, -1" % vr(B_T0 + j))
        avail = 0
        while state["pos"] + avail < len(seq) and seq[state["pos"] + avail][5] <= p:
            avail += 1
        if p <= 60:
            n = min(avail, N3[p - 44])
        else:
            n = min(avail, 10)
        if cfg.get("verbose") and nt == 2:
            print(p, "pos", state["pos"], "avail", avail, "n", n, "needs", [x[4] for x in seq[state["pos"]:state["pos"] + n]], file=sys.stderr)
        g = take(n, p, capof(cfg.get("cap2", 5) if p < 48 else cap3) if state["pos"] < kv_end else None)
        if p < 48:
            phase_work(p - 32, g)
        else:
            for x in g:
                e.many(x)
        if p == 64:
            poll_issue(-1)
        if p == 68:
            poll_check(-1)
        if p == cfg.get("sentphase", 78) and sent:
            e("s_add_u32 %s, %s, 1" % (sr(S_T2), sr(S_HG)))
            e("s_and_b32 %s, %s, 7" % (sr(S_T2), sr(S_T2)))
            e("s_lshl_b32 %s, %s, 14" % (sr(S_T2), sr(S_T2)))
            e("s_add_u32 %s, %s, %s" % (sr(S_T2), sr(S_T2), sr(S_PO)))
            for f in range(2 * nt):
                e("buffer_store_dwordx4 %s, %s, %s, %s offen offset:%d sc1" % (vr(B_T0, 4), vr(B_PA), sr(S_P, 4), sr(S_T2), f * 1024))
                ld.add(67 + 4 * sw)
        for k in range(6):
            if p == min(pc + 4 * k, lastc) + 1:
                fetch(k)
        if p == 95 and sent:
            fetch(6)
        if sent and sw > 1:
            if p == cfg.get("spoll", (85, 88))[0]:
                poll_issue(0, 1)
            if p == cfg.get("spoll", (85, 88))[1]:
                poll_check(0, 1, sw)
        for k in range(6):
            if p == pi + 4 * k:
                poll_issue(k)
            if p == min(pc + 4 * k, lastc):
                poll_check(k)
        if p == 95 and cfg.get("early6") and not sent:
            poll_issue(6)
        bar(p + 1)
    late = [k for k in range(6) if min(pc + 4 * k, lastc) > 95]
    if not sent:
        if late:
            poll_issue(6, 1)
        elif not cfg.get("early6"):
            poll_issue(6)
        for k in range(6):
            if min(pc + 4 * k, lastc) == 95:
                fetch(k)
    arrived(4)
    for j in range(-1, 4):
        accumulate(j)
    if not sent:
        for k in late:
            poll_check(k)
        poll_check(6, 1 if late else 0)
    e("s_barrier")
    if not sent:
        for k in late:
            fetch(k)
        fetch(6)
    for f in range(4 * nt):
        e("ds_read_b128 %s, %s offset:%d" % (vr(B_F + 4 * f, 4), vr(B_LA), f * 1024))
    e("s_waitcnt lgkmcnt(0)")
    for j in range(16 * nt):
        e("v_add_f32 %s, %s, %s" % (vr(B_ACC + j), vr(B_ACC + j), vr(B_F + j)))
    e("s_nop 0")
    arrived(5)
    accumulate(4)
    arrived(6)
    if sent:
        lab = P + "_last"
        e.label(lab)
        r = [dbuf(6, f) + j for f in range(2 * nt) for j in range(4)]
        e("v_max3_u32 v1, %s, %s, %s" % (vr(r[0]), vr(r[1]), vr(r[2])))
        for j in range(3, len(r) - 1, 2):
            e("v_max3_u32 v1, v1, %s, %s" % (vr(r[j]), vr(r[j + 1])))
        e("v_max_u32 v1, v1, %s" % vr(r[-1]))
        e("v_cmp_eq_u32 vcc, -1, v1")
        e("s_cbranch_vccz %s_ok" % lab)
        for f in range(2 * nt):
            e("buffer_load_dwordx4 %s, %s, %s, %s offen offset:%d sc1" % (vr(dbuf(6, f), 4), vr(B_PA), sr(S_P, 4), sr(S_T2), f * 1024))
        e("s_waitcnt vmcnt(0)")
        e("s_sub_u32 %s, %s, 1" % (sr(S_CNT), sr(S_CNT)))
        e("s_cbranch_scc0 %s" % lab)
        e.label(lab + "_ok")
    accumulate(5)
    accumulate(6)
    e("s_nop %d" % (1 if nt == 2 else 4))
    if cfg.get("trout", True):
        for k in range(4 * nt):
            a = B_ACC + 4 * k
            e("v_cvt_pk_bf16_f32 %s, %s, %s" % (vr(a), vr(a), vr(a + 1)))
            e("v_cvt_pk_bf16_f32 %s, %s, %s" % (vr(a + 1), vr(a + 2), vr(a + 3)))
            e("ds_write_b64 %s, %s offset:%d" % (vr(B_VWQ + (k & 3)), vr(a, 2), (k >> 2) * 2048))
            if k & 3 == 3:
                for i in range(2):
                    e("ds_read_b128 %s, %s offset:%d" % (vr(B_X + 16 + 8 * (k >> 2) + 4 * i, 4), vr(B_OA + 1), (2 * (k >> 2) + i) * 1024))
        for i in range(2 * nt):
            e("s_waitcnt lgkmcnt(%d)" % ((7 - i if i < 2 else 3 - i) if nt == 2 else 1 - i))
            e("buffer_store_dwordx4 %s, %s, %s, %s offen %s" % (vr(B_X + 16 + 4 * i, 4), vr(B_OA), sr(S_OUT, 4), sr(S_X + i) if i else "0", cfg.get("outpol", "sc1")))
    else:
        e("s_nop 3")
        for j in range(8 * nt):
            e("v_cvt_pk_bf16_f32 %s, %s, %s" % (vr(B_F + j), vr(B_ACC + 2 * j), vr(B_ACC + 2 * j + 1)))
        e("s_nop 1")
        for f in range(2 * nt):
            e("v_permlane16_swap_b32 %s, %s" % (vr(B_F + 4 * f), vr(B_F + 4 * f + 2)))
            e("v_permlane16_swap_b32 %s, %s" % (vr(B_F + 4 * f + 1), vr(B_F + 4 * f + 3)))
        e("s_nop 1")
        for f in range(2 * nt):
            e("buffer_store_dwordx4 %s, %s, %s, 0 offen offset:%d %s" % (vr(B_F + 4 * f, 4), vr(B_OA + (f >> 1)), sr(S_OUT, 4), (f & 1) * 64, cfg.get("outpol", "sc1")))
    if cfg.get("stamps"):
        e("s_waitcnt vmcnt(0)")
        e("s_barrier")
    e("s_endpgm")


def gen(cfg):
    e = Em()
    DIAG[0] = bool(cfg.get("diag"))
    e.raw(HEADER.rstrip("\n"))
    e.raw("; @launch grid=(256,1,1) block=(512,1,1) lds=%d" % LDS_BYTES)
    e.raw(DOC)
    e.raw('.amdgcn_target "amdgcn-amd-amdhsa--gfx950"')
    e.raw(".text")
    gen_entry(e, cfg)
    gen_pro(e, cfg, 2)
    gen_A(e, cfg, 2)
    gen_pro(e, cfg, 1)
    gen_A(e, cfg, 1)
    gen_B(e, cfg, 2)
    gen_B(e, cfg, 1)
    e.label("L_end")
    e("s_endpgm")
    e.raw('.section .rodata,"a"')
    e.raw(".p2align 6")
    e.raw(""".amdhsa_kernel %s_kernel
  .amdhsa_next_free_vgpr 256
  .amdhsa_next_free_sgpr 102
  .amdhsa_accum_offset 256
  .amdhsa_group_segment_fixed_size 0
  .amdhsa_kernarg_size 104
  .amdhsa_user_sgpr_count 2
  .amdhsa_user_sgpr_kernarg_segment_ptr 1
  .amdhsa_system_sgpr_workgroup_id_x 1
.end_amdhsa_kernel""" % NAME)
    return e.text()


if __name__ == "__main__":
    if len(sys.argv) > 2:
        cfgs = eval(open(sys.argv[2]).read())
        for k, v in cfgs.items():
            open("%s_%s.s" % (sys.argv[1], k), "w").write(gen(v))
        print(" ".join("%s_%s.s" % (sys.argv[1], k) for k in cfgs))
    else:
        open(sys.argv[1], "w").write(gen({}))
```
